```python
import torch

def _softmax(x, axis=-1):
    return torch.softmax(x, dim=axis)
def _gelu(x):
    return torch.nn.functional.gelu(x, approximate="tanh")
def _silu(x):
    return torch.nn.functional.silu(x)
def _sigmoid(x):
    return torch.sigmoid(x)
def _layernorm(x, axis=-1, eps=1e-5):
    m = x.mean(dim=axis, keepdim=True)
    v = x.var(dim=axis, keepdim=True, unbiased=False)
    return (x - m) / torch.sqrt(v + eps)
def _scatter_add(tgt, idx, src, axis=0):
    return tgt.clone().index_add_(axis, idx, src)
def _segment_sum(src, seg, n):
    out = torch.zeros((n,) + src.shape[1:], dtype=src.dtype)
    return out.index_add_(0, seg, src)
def _pad(x, pw):
    flat = tuple(v for pair in reversed(pw) for v in pair)
    return torch.nn.functional.pad(x, flat)

kernel_name = 'standalone__dense_activation_gelu__prompt'

def setup_inputs():

    _w = (lambda a: (lambda t: t.to(torch.bfloat16) if t.is_floating_point() else t)(torch.as_tensor(a)))
    B, S, D, F = 1, 2048, 512, 1376
    return {
        "x": _w((lambda *s: torch.randn(*s, dtype=torch.bfloat16) * 0.05)(B, S, D)),
        "w1": _w((lambda *s: torch.randn(*s, dtype=torch.bfloat16) * 3.2)(D, F) * (D ** -0.5)),
        "b1": _w((lambda *s: torch.randn(*s, dtype=torch.bfloat16) * 3.2)(F) * 0.01),
        "w2": _w((lambda *s: torch.randn(*s, dtype=torch.bfloat16) * 0.05)(F, D) * (F ** -0.5)),
        "b2": _w((lambda *s: torch.randn(*s, dtype=torch.bfloat16) * 0.1)(D) * 0.01),
    }

def reference(x, w1, b1, w2, b2):
    h = torch.einsum("bsd,df->bsf", x, w1) + b1
    h = _gelu(h)
    return torch.einsum("bsf,fd->bsd", h, w2) + b2
```

```python
import struct

def f32bits(x):
    return struct.unpack("<I", struct.pack("<f", x))[0]

class Asm:
    def __init__(self):
        self.lines = []
    def __call__(self, s):
        for l in s.strip("\n").split("\n"):
            self.lines.append("    " + l.strip())
    def label(self, l):
        self.lines.append(l + ":")
    def raw(self, s):
        self.lines.append(s)
    def c(self, s):
        self.lines.append("    ; " + s)
    def text(self):
        return "\n".join(self.lines) + "\n"

def vr(base, n=1):
    return f"v{base}" if n == 1 else f"v[{base}:{base+n-1}]"
def ar(base, n=1):
    return f"a{base}" if n == 1 else f"a[{base}:{base+n-1}]"
def sr(base, n=1):
    return f"s{base}" if n == 1 else f"s[{base}:{base+n-1}]"

class RegAlloc:
    def __init__(self, start=0, limit=256):
        self.n = start; self.limit = limit
    def alloc(self, cnt=1, align=1):
        self.n = (self.n + align - 1) // align * align
        r = self.n; self.n += cnt
        assert self.n <= self.limit, "out of registers"
        return r

HEADER = """; Kernarg layout for this problem (64 bytes, ptrs only, base s[0:1]):
"""

def kernel_desc(name, vgpr, sgpr, accum=None):
    if accum is None:
        accum = (vgpr + 3) // 4 * 4
    return f""".p2align 6
.amdhsa_kernel {name}
  .amdhsa_next_free_vgpr {vgpr}
  .amdhsa_next_free_sgpr {sgpr}
  .amdhsa_accum_offset {accum}
  .amdhsa_group_segment_fixed_size 0
  .amdhsa_kernarg_size 64
  .amdhsa_user_sgpr_count 2
  .amdhsa_user_sgpr_kernarg_segment_ptr 1
  .amdhsa_system_sgpr_workgroup_id_x 1
  .amdhsa_float_denorm_mode_32 3
.end_amdhsa_kernel
"""

def kernel_start(name):
    return f""".globl {name}
.p2align 8
.type {name},@function
{name}:
"""
```

```python
import sys, math
from asmlib import *

H_BYTES = 64 * 86 * 1024
C0 = -2.0 * math.sqrt(2.0 / math.pi) * math.log2(math.e)
C1 = C0 * 0.044715

def stamp(a, idx, sbase, on):
    if on:
        a(f"s_memrealtime s[{sbase+2*idx}:{sbase+2*idx+1}]")

def gelu8(a, acc, T, O, sC1, vC0):
    for i in range(0, 8, 2):
        a(f"v_pk_mul_f32 {vr(T+i,2)}, {vr(acc+i,2)}, {vr(acc+i,2)}")
    for i in range(0, 8, 2):
        a(f"v_pk_fma_f32 {vr(T+i,2)}, {vr(T+i,2)}, {sr(sC1,2)}, {vr(vC0,2)}")
    for i in range(0, 8, 2):
        a(f"v_pk_mul_f32 {vr(T+i,2)}, {vr(T+i,2)}, {vr(acc+i,2)}")
    for i in range(8):
        a(f"v_exp_f32 {vr(T+i)}, {vr(T+i)}")
    for i in range(0, 8, 2):
        a(f"v_pk_add_f32 {vr(T+i,2)}, {vr(T+i,2)}, 1.0 op_sel_hi:[1,0]")
    for i in range(8):
        a(f"v_rcp_f32 {vr(T+i)}, {vr(T+i)}")
    for i in range(0, 8, 2):
        a(f"v_pk_mul_f32 {vr(T+i,2)}, {vr(T+i,2)}, {vr(acc+i,2)}")
    for i in range(0, 8, 2):
        a(f"v_cvt_pk_bf16_f32 {vr(O+i//2)}, {vr(T+i)}, {vr(T+i+1)}")

def gen_k1(prof=False):
    a = Asm()
    NS = 5
    XW = NS * 4096
    WB = 4 * XW
    a("s_load_dwordx4 s[8:11], s[0:1], 0")
    a("s_load_dwordx2 s[12:13], s[0:1], 16")
    a("s_load_dwordx2 s[14:15], s[0:1], 56")
    stamp(a, 0, 64, prof)
    a("s_cmp_ge_u32 s2, 256")
    a("s_cbranch_scc1 K1_END")
    a("""s_and_b32 s3, s2, 7
    s_lshr_b32 s4, s2, 3
    s_and_b32 s5, s3, 3
    s_lshl_b32 s5, s5, 2
    s_and_b32 s6, s4, 3
    s_add_u32 s5, s5, s6
    s_lshr_b32 s6, s3, 2
    s_lshl_b32 s6, s6, 3
    s_lshr_b32 s7, s4, 2
    s_add_u32 s6, s6, s7
    s_cmp_ge_u32 s6, 15
    s_cbranch_scc1 K1_END""")
    R = RegAlloc(1)
    vLane = R.alloc(); vW = R.alloc(); t0 = R.alloc(); t1 = R.alloc(); t2 = R.alloc()
    vOX = R.alloc(4); vOW = R.alloc(3); vAX = R.alloc(4); vAW = R.alloc(); vOB = R.alloc(); vOH = R.alloc()
    vC0 = R.alloc(2, 2)
    acc = R.alloc(48, 4)
    fx = [R.alloc(4, 4) for _ in range(2)]
    fw = [R.alloc(12, 4) for _ in range(2)]
    vb = R.alloc(24, 4)
    T = R.alloc(8, 4); O = [R.alloc(4, 4) for _ in range(6)]
    a(f"v_and_b32 v{vLane}, 63, v0")
    a(f"v_lshrrev_b32 v{vW}, 6, v0")
    a("s_nop 0")
    a(f"v_readfirstlane_b32 s7, v{vW}")
    a(f"v_lshrrev_b32 v{t0}, 3, v{vLane}")
    a(f"v_lshl_add_u32 v{t0}, v{vW}, 5, v{t0}")
    a(f"v_lshlrev_b32 v{t0}, 10, v{t0}")
    a(f"v_lshrrev_b32 v{t1}, 4, v{vLane}")
    a(f"v_and_b32 v{t2}, 7, v{vLane}")
    a(f"v_xor_b32 v{t1}, v{t1}, v{t2}")
    a(f"v_lshl_add_u32 v{vOX}, v{t1}, 4, v{t0}")
    a(f"v_xor_b32 v{t1}, 4, v{t1}")
    a(f"v_lshl_add_u32 v{vOX+1}, v{t1}, 4, v{t0}")
    a(f"v_add_u32 v{vOX+1}, {8192-1024}, v{vOX+1}")
    a(f"v_add_u32 v{vOX+2}, {2*(8192-1024)}, v{vOX}")
    a(f"v_add_u32 v{vOX+3}, {2*(8192-1024)}, v{vOX+1}")
    a(f"v_mul_u32_u24 v{t0}, 192, v{vW}")
    a(f"v_add_u32 v{t0}, v{t0}, v{vLane}")
    for j in range(3):
        if j:
            a(f"v_add_u32 v{t0}, 64, v{t0}")
        a(f"v_mul_u32_u24 v{t1}, 43691, v{t0}")
        a(f"v_lshrrev_b32 v{t1}, 19, v{t1}")
        a(f"v_mul_u32_u24 v{t2}, 12, v{t1}")
        a(f"v_sub_u32 v{t2}, v{t0}, v{t2}")
        a(f"v_mul_u32_u24 v{t1}, 2752, v{t1}")
        a(f"v_lshl_add_u32 v{vOW+j}, v{t2}, 4, v{t1}")
        if j:
            a(f"v_subrev_u32 v{vOW+j}, {1024*j}, v{vOW+j}")
    a(f"v_and_b32 v{t0}, 31, v{vLane}")
    a(f"v_lshrrev_b32 v{t1}, 1, v{t0}")
    a(f"v_and_b32 v{t1}, 7, v{t1}")
    a(f"v_lshrrev_b32 v{t2}, 5, v{vLane}")
    a(f"v_xor_b32 v{t1}, v{t1}, v{t2}")
    a(f"v_lshlrev_b32 v{t0}, 7, v{t0}")
    a(f"v_mul_u32_u24 v{vAX}, {XW}, v{vW}")
    a(f"v_add_u32 v{t0}, v{t0}, v{vAX}")
    for t in range(4):
        a(f"v_xor_b32 v{vAX+t}, {2*t}, v{t1}")
        a(f"v_lshl_add_u32 v{vAX+t}, v{vAX+t}, 4, v{t0}")
    a(f"v_lshlrev_b32 v{vOB}, 3, v{t2}")
    a(f"v_bfe_u32 v{t0}, v{vLane}, 2, 2")
    a(f"v_add_u32 v{t0}, v{t0}, v{vOB}")
    a(f"v_mul_u32_u24 v{t0}, 192, v{t0}")
    a(f"v_bfe_u32 v{t1}, v{vLane}, 4, 1")
    a(f"v_lshl_add_u32 v{t0}, v{t1}, 5, v{t0}")
    a(f"v_and_b32 v{t1}, 3, v{vLane}")
    a(f"v_lshl_add_u32 v{t0}, v{t1}, 3, v{t0}")
    a(f"v_add_u32 v{vAW}, {WB}, v{t0}")
    a(f"v_lshlrev_b32 v{vOH}, 4, v{vLane}")
    a(f"v_mov_b32 v{vC0}, 0x{f32bits(C0):08x}")
    a(f"v_mov_b32 v{vC0+1}, 0x{f32bits(C0):08x}")
    a(f"s_mov_b32 s36, 0x{f32bits(C1):08x}")
    a(f"s_mov_b32 s37, 0x{f32bits(C1):08x}")
    a(f"s_mul_i32 s32, s7, {XW}")
    a(f"s_mul_i32 s33, s7, 3072")
    a(f"s_add_u32 s33, s33, {WB}")
    a("s_mul_i32 s34, s6, 192")
    a("s_lshl_b32 s38, s5, 2")
    a("s_add_u32 s38, s38, s7")
    a("s_mul_i32 s38, s38, 86")
    a("s_mul_i32 s39, s6, 6")
    a("s_add_u32 s38, s38, s39")
    a("s_lshl_b32 s38, s38, 10")
    a("s_add_u32 s39, s38, 4096")
    a("s_lshl_b32 s35, s5, 17")
    a("s_waitcnt lgkmcnt(0)")
    stamp(a, 1, 64, prof)
    a("""s_add_u32 s16, s8, s35
    s_addc_u32 s17, s9, 0
    s_mov_b32 s18, 131072
    s_mov_b32 s19, 0x20000
    s_add_u32 s20, s10, s34
    s_addc_u32 s21, s11, 0
    s_sub_u32 s22, 1409024, s34
    s_mov_b32 s23, 0x20000
    s_mov_b32 s24, s12
    s_mov_b32 s25, s13
    s_mov_b32 s26, 2752
    s_mov_b32 s27, 0x20000
    s_mov_b32 s28, s14
    s_mov_b32 s29, s15""")
    a(f"s_mov_b32 s30, {H_BYTES}")
    a("s_mov_b32 s31, 0x20000")
    for p in range(3):
        for q in range(4):
            a(f"buffer_load_dwordx2 {vr(vb+(p*4+q)*2,2)}, v{vOB}, s[24:27], s34 offen offset:{64*p+16*q}")
    def dma(c):
        slot = c % NS
        a(f"s_add_u32 m0, s32, {slot*4096}")
        a(f"s_mov_b32 s40, {c*128}")
        for j in range(4):
            a(f"buffer_load_dwordx4 v{vOX+j}, s[16:19], s40 offen offset:{1024*j} lds")
        a(f"s_add_u32 m0, s33, {slot*12288}")
        a(f"s_mov_b32 s41, {c*176128}")
        for j in range(3):
            a(f"buffer_load_dwordx4 v{vOW+j}, s[20:23], s41 offen offset:{1024*j} lds")
    for c in range(NS):
        dma(c)
    stamp(a, 2, 64, prof)
    a("s_waitcnt vmcnt(35)")
    for i in range(24):
        a(f"v_lshlrev_b32 v{acc+2*i}, 16, v{vb+i}")
        a(f"v_and_b32 v{acc+2*i+1}, 0xffff0000, v{vb+i}")
    def reads(c, t):
        slot = c % NS; s = t & 1
        a(f"ds_read_b128 {vr(fx[s],4)}, v{vAX+t} offset:{slot*4096}")
        for p in range(3):
            for q in range(2):
                a(f"ds_read_b64_tr_b16 {vr(fw[s]+4*p+2*q,2)}, v{vAW} offset:{slot*12288+t*3072+q*768+p*64}")
    def mfma(t):
        s = t & 1
        for p in range(3):
            a(f"v_mfma_f32_32x32x16_bf16 {vr(acc+16*p,16)}, {vr(fw[s]+4*p,4)}, {vr(fx[s],4)}, {vr(acc+16*p,16)}")
    waits = [28, 21, 21, 21, 21, 14, 7, 0]
    for c in range(8):
        a(f"s_waitcnt vmcnt({waits[c]}) lgkmcnt(0)")
        a("s_barrier")
        if c == 0: stamp(a, 3, 64, prof)
        if c == 7: stamp(a, 4, 64, prof)
        if c >= 1 and c + 4 <= 7:
            dma(c + 4)
        reads(c, 0)
        if c >= 1:
            mfma(3)
        for t in range(1, 4):
            reads(c, t)
            a("s_waitcnt lgkmcnt(7)")
            mfma(t - 1)
    a("s_waitcnt lgkmcnt(0)")
    mfma(3)
    stamp(a, 5, 64, prof)
    a("s_nop 9")
    for p in range(3):
        if p == 1:
            a("s_cmp_eq_u32 s6, 14")
            a("s_cbranch_scc1 K1_DONE")
        for e in range(2):
            o = O[2*p+e]
            gelu8(a, acc + 16*p + 8*e, T, o, 36, vC0)
            idx = 2*p + e
            so = "s38" if idx < 4 else "s39"
            a(f"buffer_store_dwordx4 {vr(o,4)}, v{vOH}, s[28:31], {so} offen offset:{(idx%4)*1024}")
    a.label("K1_DONE")
    if prof:
        stamp(a, 6, 64, prof)
        a("s_waitcnt vmcnt(0)")
        stamp(a, 7, 64, prof)
        a("s_waitcnt lgkmcnt(0)")
        emit_stamps(a, 64, 8, 14, 0)
    a.label("K1_END")
    a("s_endpgm")
    return a.text(), R.n

def emit_stamps(a, sbase, n, sws, which):
    a(f"s_add_u32 s44, s{sws}, {128<<20}")
    a(f"s_addc_u32 s45, s{sws+1}, 0")
    a("s_mov_b32 s46, 0x1000000")
    a("s_mov_b32 s47, 0x20000")
    a("s_lshl_b32 s48, s2, 2")
    a("s_add_u32 s48, s48, s7")
    a(f"s_add_u32 s48, s48, {which*1024}")
    a(f"s_mul_i32 s48, s48, {n*8}")
    a("v_mov_b32 v1, 0")
    for i in range(n):
        a(f"v_mov_b32 v2, s{sbase+2*i}")
        a(f"v_mov_b32 v3, s{sbase+2*i+1}")
        a(f"buffer_store_dwordx2 v[2:3], v1, s[44:47], s48 offen offset:{8*i}")
        a("s_nop 1")

def gen_k2(prof=False):
    a = Asm()
    NSTEP = 22; D = 14; RING = 16
    a("s_load_dwordx4 s[8:11], s[0:1], 24")
    a("s_load_dwordx2 s[12:13], s[0:1], 40")
    a("s_load_dwordx2 s[14:15], s[0:1], 56")
    stamp(a, 0, 64, prof)
    a("s_cmp_ge_u32 s2, 256")
    a("s_cbranch_scc1 K2_END")
    a("""s_and_b32 s3, s2, 7
    s_lshr_b32 s4, s2, 3
    s_lshl_b32 s5, s3, 2
    s_and_b32 s6, s4, 3
    s_add_u32 s5, s5, s6
    s_lshr_b32 s6, s4, 2""")
    R = RegAlloc(1)
    vLane = R.alloc(); vW = R.alloc(); t0 = R.alloc(); t1 = R.alloc(); t2 = R.alloc()
    vOW = R.alloc(4); vOH = R.alloc(2); vAW = R.alloc(2); vOB = R.alloc(); vRW = R.alloc(); vRR = R.alloc(); vOO = R.alloc()
    vb = R.alloc(4, 4)
    acc = R.alloc(64, 4)
    fw = [R.alloc(8, 4) for _ in range(2)]
    fh = [R.alloc(8, 4) for _ in range(D)]
    a(f"v_and_b32 v{vLane}, 63, v0")
    a(f"v_lshrrev_b32 v{vW}, 6, v0")
    a("s_nop 0")
    a(f"v_readfirstlane_b32 s7, v{vW}")
    a(f"v_lshrrev_b32 v{t0}, 3, v{vLane}")
    a(f"v_bfe_u32 v{t1}, v{vLane}, 4, 1")
    a(f"v_lshlrev_b32 v{t1}, 2, v{t1}")
    a(f"v_and_b32 v{t2}, 7, v{vLane}")
    a(f"v_xor_b32 v{t1}, v{t1}, v{t2}")
    a(f"v_mul_u32_u24 v{t2}, 352, v{vW}")
    a(f"v_add_u32 v{t0}, v{t0}, v{t2}")
    a(f"v_lshlrev_b32 v{t0}, 10, v{t0}")
    a(f"v_lshl_add_u32 v{vOW}, v{t1}, 4, v{t0}")
    for j in range(1, 4):
        a(f"v_add_u32 v{vOW+j}, {j*(8192-1024)}, v{vOW}")
    a(f"v_mul_u32_u24 v{t0}, {22*1024}, v{vW}")
    a(f"v_lshl_add_u32 v{vOH}, v{vLane}, 4, v{t0}")
    a(f"v_add_u32 v{vOH+1}, {86*1024}, v{vOH}")
    a(f"v_lshrrev_b32 v{t0}, 5, v{vLane}")
    a(f"v_bfe_u32 v{t1}, v{vLane}, 2, 2")
    a(f"v_lshl_add_u32 v{t0}, v{t0}, 2, v{t1}")
    a(f"v_lshlrev_b32 v{t0}, 7, v{t0}")
    a(f"v_bfe_u32 v{t1}, v{vLane}, 3, 1")
    a(f"v_lshl_add_u32 v{t0}, v{t1}, 6, v{t0}")
    a(f"v_bfe_u32 v{t1}, v{vLane}, 4, 1")
    a(f"v_lshl_add_u32 v{t0}, v{t1}, 5, v{t0}")
    a(f"v_and_b32 v{t1}, 3, v{vLane}")
    a(f"v_lshl_add_u32 v{t0}, v{t1}, 3, v{t0}")
    a(f"v_lshl_add_u32 v{vAW}, v{vW}, 15, v{t0}")
    a(f"v_xor_b32 v{vAW+1}, 64, v{vAW}")
    RS = 272; RW = 64 * RS
    a(f"v_and_b32 v{t0}, 31, v{vLane}")
    a(f"v_mul_u32_u24 v{t0}, {RS}, v{t0}")
    a(f"v_lshrrev_b32 v{t1}, 5, v{vLane}")
    a(f"v_lshl_add_u32 v{t0}, v{t1}, 4, v{t0}")
    a(f"v_mul_u32_u24 v{t1}, {RW}, v{vW}")
    a(f"v_add_u32 v{vRW}, v{t0}, v{t1}")
    a(f"v_lshrrev_b32 v{t0}, 3, v{vLane}")
    a(f"v_lshl_add_u32 v{t0}, v{vW}, 4, v{t0}")
    a(f"v_and_b32 v{t1}, 7, v{vLane}")
    a(f"v_mul_u32_u24 v{t2}, {RS}, v{t0}")
    a(f"v_lshl_add_u32 v{vRR}, v{t1}, 5, v{t2}")
    a(f"v_lshlrev_b32 v{vOB}, 4, v{t1}")
    a(f"v_lshl_add_u32 v{vOO}, v{t0}, 10, v{vOB}")
    a("s_lshl_b32 s32, s7, 15")
    a("s_lshl_b32 s34, s6, 7")
    a(f"s_mul_i32 s35, s5, {2*86*1024}")
    a("s_lshl_b32 s36, s5, 16")
    a("s_add_u32 s36, s36, s34")
    a("s_cmp_eq_u32 s7, 3")
    a(f"s_cselect_b32 s38, 0x40000000, {5*4096}")
    for i in range(16):
        pass
    a("s_waitcnt lgkmcnt(0)")
    stamp(a, 1, 64, prof)
    a("""s_add_u32 s16, s8, s34
    s_addc_u32 s17, s9, 0
    s_sub_u32 s18, 1409024, s34
    s_mov_b32 s19, 0x20000
    s_add_u32 s20, s14, s35
    s_addc_u32 s21, s15, 0""")
    a(f"s_mov_b32 s22, {2*86*1024}")
    a("""s_mov_b32 s23, 0x20000
    s_mov_b32 s24, s10
    s_mov_b32 s25, s11
    s_mov_b32 s26, 1024
    s_mov_b32 s27, 0x20000
    s_add_u32 s28, s12, s36
    s_addc_u32 s29, s13, 0
    s_sub_u32 s30, 2097152, s36
    s_mov_b32 s31, 0x20000""")
    a(f"buffer_load_dwordx4 {vr(vb,4)}, v{vOB}, s[24:27], s34 offen")
    def loads(s):
        if s % 2 == 0:
            a(f"s_add_u32 m0, s32, {(s % RING)*2048}")
            a(f"s_mov_b32 s40, {s*16384}")
        if s % 4 == 0 and s < 20:
            a(f"s_mov_b32 s41, {(s//4)*4096}")
        for b in range(2):
            j = (s % 2) * 2 + b
            a(f"buffer_load_dwordx4 v{vOW+j}, s[16:19], s40 offen offset:{1024*j} lds")
        so = "s41" if s < 20 else "s38"
        for b in range(2):
            a(f"buffer_load_dwordx4 {vr(fh[s%D]+4*b,4)}, v{vOH+b}, s[20:23], {so} offen offset:{(s%4)*1024}")
    for s in range(D):
        loads(s)
    stamp(a, 2, 64, prof)
    for i in range(64):
        a(f"v_mov_b32 v{acc+i}, 0")
    def reads(s):
        for p in range(2):
            for q in range(2):
                a(f"ds_read_b64_tr_b16 {vr(fw[s&1]+4*p+2*q,2)}, v{vAW+p} offset:{(s%RING)*2048+q*1024}")
    def outstanding_after(s_issued_last, s_needed):
        return 4 * (s_issued_last - s_needed)
    last_issued = D - 1
    a(f"s_waitcnt vmcnt({outstanding_after(last_issued, 0)})")
    stamp(a, 3, 64, prof)
    reads(0)
    for s in range(NSTEP):
        if s + 1 < NSTEP:
            a(f"s_waitcnt vmcnt({outstanding_after(last_issued, s+1)})")
            reads(s + 1)
            a("s_waitcnt lgkmcnt(4)")
        else:
            stamp(a, 4, 64, prof)
            a("s_waitcnt lgkmcnt(0)")
        for p in range(2):
            for b in range(2):
                ac = acc + 16 * (2 * b + p)
                a(f"v_mfma_f32_32x32x16_bf16 {vr(ac,16)}, {vr(fw[s&1]+4*p,4)}, {vr(fh[s%D]+4*b,4)}, {vr(ac,16)}")
        if s + D < NSTEP:
            loads(s + D)
            last_issued = s + D
    stamp(a, 5, 64, prof)
    a("s_barrier")
    a("s_nop 7")
    a("s_nop 3")
    for b in range(2):
        for p in range(2):
            for q in range(4):
                ac = acc + 16 * (2 * b + p) + 4 * q
                off = b * 32 * RS + (p * 32 + q * 8) * 4
                a(f"ds_write_b128 v{vRW}, {vr(ac,4)} offset:{off}")
    bf = fh[0]
    for i in range(4):
        a(f"v_lshlrev_b32 v{bf+2*i}, 16, v{vb+i}")
        a(f"v_and_b32 v{bf+2*i+1}, 0xffff0000, v{vb+i}")
    a("s_waitcnt lgkmcnt(0)")
    a("s_barrier")
    rd = acc
    for half in range(2):
        for w in range(4):
            for e in range(2):
                r = rd + (half * 8 + w * 2 + e) * 4
                a(f"ds_read_b128 {vr(r,4)}, v{vRR} offset:{w*RW + half*8*RS + e*16}")
    for half in range(2):
        a(f"s_waitcnt lgkmcnt({8 if half == 0 else 0})")
        base = rd + half * 32
        for i in range(0, 8, 2):
            a(f"v_pk_add_f32 {vr(base+i,2)}, {vr(base+i,2)}, {vr(base+8+i,2)}")
            a(f"v_pk_add_f32 {vr(base+16+i,2)}, {vr(base+16+i,2)}, {vr(base+24+i,2)}")
        for i in range(0, 8, 2):
            a(f"v_pk_add_f32 {vr(base+i,2)}, {vr(base+i,2)}, {vr(bf+i,2)}")
        for i in range(0, 8, 2):
            a(f"v_pk_add_f32 {vr(base+i,2)}, {vr(base+i,2)}, {vr(base+16+i,2)}")
        o = fh[2 + half]
        for i in range(4):
            a(f"v_cvt_pk_bf16_f32 v{o+i}, v{base+2*i}, v{base+2*i+1}")
        if half == 1:
            a("s_movk_i32 s42, 0x2000")
        a(f"buffer_store_dwordx4 {vr(o,4)}, v{vOO}, s[28:31], {'0' if half == 0 else 's42'} offen")
    if prof:
        stamp(a, 6, 64, prof)
        a("s_waitcnt vmcnt(0)")
        stamp(a, 7, 64, prof)
        a("s_waitcnt lgkmcnt(0)")
        emit_stamps(a, 64, 8, 14, 1)
    a.label("K2_END")
    a("s_endpgm")
    return a.text(), R.n

def main(out, prof):
    k1, n1 = gen_k1(prof)
    k2, n2 = gen_k2(prof)
    s = HEADER
    s += "; @launch kernel=ffn1_kernel grid=(256,1,1) block=(256,1,1) lds=143360\n"
    s += "; @launch kernel=ffn2_kernel grid=(256,1,1) block=(256,1,1) lds=131072\n"
    s += '.amdgcn_target "amdgcn-amd-amdhsa--gfx950"\n.text\n'
    s += kernel_start("ffn1_kernel") + k1
    s += kernel_start("ffn2_kernel") + k2
    s += '.section .rodata,"a"\n'
    s += kernel_desc("ffn1_kernel", n1, 96)
    s += kernel_desc("ffn2_kernel", n2, 96)
    open(out, "w").write(s)
    print("vgprs", n1, n2)

if __name__ == "__main__":
    main(sys.argv[1], len(sys.argv) > 2 and sys.argv[2] == "prof")
```

```python
import sys
import gen_v1
from asmlib import *

def emit_stamps(a, sbase, n, sws, which):
    a("s_load_dwordx2 s[44:45], s[0:1], 48")
    a("s_waitcnt lgkmcnt(0)")
    a("s_mov_b32 s46, 256")
    a("s_mov_b32 s47, 0x20000")
    a("v_mov_b32 v1, 0")
    a("s_mov_b64 exec, 1")
    for i in range(n):
        a(f"v_mov_b32 v2, s{sbase+2*i}")
        a(f"v_not_b32 v3, v2")
        a(f"buffer_atomic_umax v2, v1, s[44:47], 0 offen offset:{4*i}")
        a(f"buffer_atomic_umax v3, v1, s[44:47], 0 offen offset:{32+4*i}")
        a("s_nop 1")
gen_v1.emit_stamps = emit_stamps

def spin(kidx, word, neg):
    a = Asm()
    a("s_load_dwordx2 s[4:5], s[0:1], 48")
    a("s_cmp_ge_u32 s2, 1")
    a("s_cbranch_scc1 SP_END")
    a("s_waitcnt lgkmcnt(0)")
    back = (2 - kidx) * 512
    a(f"s_sub_u32 s4, s4, {back}")
    a("s_subb_u32 s5, s5, 0")
    a(f"s_load_dword s6, s[4:5], {word*4}")
    a("s_waitcnt lgkmcnt(0)")
    if neg:
        a("s_not_b32 s6, s6")
    a.label("SP_LOOP")
    a("s_memrealtime s[8:9]")
    a("s_waitcnt lgkmcnt(0)")
    a("s_sub_u32 s10, s8, s6")
    a("s_cmp_lt_u32 s10, 10000")
    a("s_cbranch_scc1 SP_LOOP")
    a.label("SP_END")
    a("s_endpgm")
    return a.text()

def main(out, kidx, word, neg):
    k1, n1 = gen_v1.gen_k1(True)
    k2, n2 = gen_v1.gen_k2(True)
    s = HEADER
    s += "; @launch kernel=ffn1_kernel grid=(256,1,1) block=(256,1,1) lds=143360\n"
    s += "; @launch kernel=ffn2_kernel grid=(256,1,1) block=(256,1,1) lds=131072\n"
    s += "; @launch kernel=spin_kernel grid=(1,1,1) block=(64,1,1) lds=0\n"
    s += '.amdgcn_target "amdgcn-amd-amdhsa--gfx950"\n.text\n'
    s += kernel_start("ffn1_kernel") + k1
    s += kernel_start("ffn2_kernel") + k2
    s += kernel_start("spin_kernel") + spin(kidx, word, neg)
    s += '.section .rodata,"a"\n'
    s += kernel_desc("ffn1_kernel", n1, 96)
    s += kernel_desc("ffn2_kernel", n2, 96)
    s += kernel_desc("spin_kernel", 8, 32)
    open(out, "w").write(s)

main("cal_k1start.s", 0, 8, True)
main("cal_k1end.s", 0, 7, False)
main("cal_k2start.s", 1, 8, True)
main("cal_k2end.s", 1, 7, False)
main("cal_k1s2max.s", 0, 2, False)
main("cal_k1s0max.s", 0, 0, False)
```

```python
from asmlib import *
def spin_kernel(nk, n, sel_which, sel_idx, sel_max, outs, nwaves=1024):
    a = Asm()
    a("s_load_dwordx2 s[4:5], s[0:1], 48")
    a("s_load_dwordx2 s[6:7], s[0:1], 56")
    a("s_memrealtime s[20:21]")
    a("s_cmp_ge_u32 s2, 1")
    a("s_cbranch_scc1 SP_END")
    a("s_waitcnt lgkmcnt(0)")
    a(f"s_add_u32 s8, s6, {128<<20}")
    a("s_addc_u32 s9, s7, 0")
    a("s_mov_b32 s10, 0x1000000")
    a("s_mov_b32 s11, 0x20000")
    a("s_mov_b32 s12, s4")
    a("s_mov_b32 s13, s5")
    a("s_mov_b32 s14, 256")
    a("s_mov_b32 s15, 0x20000")
    a("v_lshlrev_b32 v1, 2, v0")
    a("v_mov_b32 v2, 0")
    a("v_mov_b32 v3, -1")
    a("ds_write_b32 v1, v2")
    a("ds_write_b32 v1, v3 offset:256")
    a(f"v_mul_u32_u24 v4, {n*8}, v0")
    a("s_waitcnt lgkmcnt(0)")
    a("s_mov_b32 s22, 100000")
    for which in range(nk):
        a(f"s_mov_b32 s16, {which*nwaves*n*8}")
        a(f"s_mov_b32 s17, {nwaves//64}")
        for i in range(n):
            a(f"v_mov_b32 v{32+i}, 0")
            a(f"v_mov_b32 v{64+i}, -1")
        a.label(f"SP_L{which}")
        for i in range(n):
            a(f"buffer_load_dword v{8+i}, v4, s[8:11], s16 offen offset:{8*i}")
        a("s_waitcnt vmcnt(0)")
        for i in range(n):
            a(f"v_sub_u32 v{8+i}, s20, v{8+i}")
            a(f"v_cmp_gt_u32 vcc, s22, v{8+i}")
            a("s_nop 1")
            a(f"v_cndmask_b32 v5, 0, v{8+i}, vcc")
            a(f"v_cndmask_b32 v6, -1, v{8+i}, vcc")
            a(f"v_max_u32 v{32+i}, v{32+i}, v5")
            a(f"v_min_u32 v{64+i}, v{64+i}, v6")
        a(f"s_add_u32 s16, s16, {64*n*8}")
        a("s_sub_u32 s17, s17, 1")
        a("s_cmp_lg_u32 s17, 0")
        a(f"s_cbranch_scc1 SP_L{which}")
        a("v_mov_b32 v7, 0")
        for i in range(n):
            a(f"ds_max_u32 v7, v{32+i} offset:{4*(which*n+i)}")
            a(f"ds_min_u32 v7, v{64+i} offset:{256+4*(which*n+i)}")
        a("s_waitcnt lgkmcnt(0)")
    a("v_mov_b32 v7, 0")
    a("ds_read_b32 v8, v7")
    for j, (w, i, mx) in enumerate(outs):
        a(f"ds_read_b32 v{16+j}, v7 offset:{(256 if mx else 0)+4*(w*n+i)}")
    a(f"ds_read_b32 v9, v7 offset:{(256 if sel_max else 0)+4*(sel_which*n+sel_idx)}")
    a("s_waitcnt lgkmcnt(0)")
    a("s_mov_b64 exec, 1")
    for j in range(len(outs)):
        a(f"v_sub_u32 v{16+j}, v8, v{16+j}")
        a(f"buffer_store_dword v{16+j}, v7, s[12:15], 0 offen offset:{4*j}")
    a("v_readfirstlane_b32 s23, v9")
    a("s_nop 3")
    a("s_sub_u32 s23, s20, s23")
    a.label("SP_LOOP")
    a("s_memrealtime s[8:9]")
    a("s_waitcnt lgkmcnt(0)")
    a("s_sub_u32 s10, s8, s23")
    a("s_cmp_lt_u32 s10, 10000")
    a("s_cbranch_scc1 SP_LOOP")
    a.label("SP_END")
    a("s_endpgm")
    return a.text()
```

```python
import sys
import gen_v1
from asmlib import *
from spinlib import spin_kernel
outs = [(0,i,True) for i in range(8)] + [(1,0,False),(1,0,True),(1,1,True),(1,2,True),(1,3,True),(1,4,True),(1,6,True),(1,7,True)]
def main(out, kidx, word, mx):
    k1, n1 = gen_v1.gen_k1(True)
    k2, n2 = gen_v1.gen_k2(True)
    s = HEADER
    s += "; @launch kernel=ffn1_kernel grid=(256,1,1) block=(256,1,1) lds=143360\n"
    s += "; @launch kernel=ffn2_kernel grid=(256,1,1) block=(256,1,1) lds=131072\n"
    s += "; @launch kernel=spin_kernel grid=(1,1,1) block=(64,1,1) lds=512\n"
    s += '.amdgcn_target "amdgcn-amd-amdhsa--gfx950"\n.text\n'
    s += kernel_start("ffn1_kernel") + k1
    s += kernel_start("ffn2_kernel") + k2
    s += kernel_start("spin_kernel") + spin_kernel(2, 8, kidx, word, mx, outs)
    s += '.section .rodata,"a"\n'
    s += kernel_desc("ffn1_kernel", n1, 96)
    s += kernel_desc("ffn2_kernel", n2, 96)
    s += kernel_desc("spin_kernel", 96, 32)
    open(out, "w").write(s)

main("cal_k1start.s", 0, 0, False)
main("cal_k1end.s", 0, 7, True)
main("cal_k2start.s", 1, 0, False)
main("cal_k2end.s", 1, 7, True)
main("cal_k1s2max.s", 0, 2, True)
main("cal_k1s0max.s", 0, 0, True)
```

```python
import sys, math
from asmlib import *

MB_BYTES = 86 * 1024
MBS = 88 * 1024
H_BYTES = 64 * MBS
C0 = -2.0 * math.sqrt(2.0 / math.pi) * math.log2(math.e)
C1 = C0 * 0.044715
NAME = "standalone__dense_activation_gelu__prompt_kernel"
SLOT = 28672
DBASE = 4 * SLOT
NST = 16

def gelu8_pk(acc, T, O, sC1, vC0):
    l = []
    l += [f"v_pk_mul_f32 {vr(T+i,2)}, {vr(acc+i,2)}, {vr(acc+i,2)}" for i in range(0, 8, 2)]
    l += [f"v_pk_fma_f32 {vr(T+i,2)}, {vr(T+i,2)}, {sr(sC1,2)}, {vr(vC0,2)}" for i in range(0, 8, 2)]
    l += [f"v_pk_mul_f32 {vr(T+i,2)}, {vr(T+i,2)}, {vr(acc+i,2)}" for i in range(0, 8, 2)]
    l += [f"v_exp_f32 {vr(T+i)}, {vr(T+i)}" for i in range(8)]
    l += [f"v_pk_add_f32 {vr(T+i,2)}, {vr(T+i,2)}, 1.0 op_sel_hi:[1,0]" for i in range(0, 8, 2)]
    l += [f"v_rcp_f32 {vr(T+i)}, {vr(T+i)}" for i in range(8)]
    l += [f"v_pk_mul_f32 {vr(T+i,2)}, {vr(T+i,2)}, {vr(acc+i,2)}" for i in range(0, 8, 2)]
    l += [f"v_cvt_pk_bf16_f32 {vr(O+i//2)}, {vr(T+i)}, {vr(T+i+1)}" for i in range(0, 8, 2)]
    return l
def gelu8_sc(acc, T, O, sC1, vC0):
    l = []
    l += [f"v_mul_f32 v{T+i}, v{acc+i}, v{acc+i}" for i in range(8)]
    l += [f"v_fma_f32 v{T+i}, v{T+i}, s{sC1}, v{vC0}" for i in range(8)]
    l += [f"v_mul_f32 v{T+i}, v{T+i}, v{acc+i}" for i in range(8)]
    l += [f"v_exp_f32 v{T+i}, v{T+i}" for i in range(8)]
    l += [f"v_add_f32 v{T+i}, 1.0, v{T+i}" for i in range(8)]
    l += [f"v_rcp_f32 v{T+i}, v{T+i}" for i in range(8)]
    l += [f"v_mul_f32 v{T+i}, v{T+i}, v{acc+i}" for i in range(8)]
    l += [f"v_cvt_pk_bf16_f32 {vr(O+i//2)}, {vr(T+i)}, {vr(T+i+1)}" for i in range(0, 8, 2)]
    return l

def w2_lds(pos):
    if pos == 10: pos = 0
    if pos < 3:
        return DBASE + pos * 16384
    return (pos - 3) * 16384

def gen(prof=0, out_aux="", touch=True, spf=False, w2sched=(2, 2), lastp=True, PF=8, psleep=2, thr=None, rot1='r2', rot2=0, pfx=False, pfw=0, sp3=True, lsp=(1,2,3,4)):
    a = Asm()
    SB = 70
    def stamp(i):
        if prof == 1:
            a(f"s_memrealtime s[{SB+2*i}:{SB+2*i+1}]")
    def fstamp(i):
        if prof == 2:
            a(f"s_memrealtime s[{SB+2*i}:{SB+2*i+1}]")
    if rot1 == "xcd":
        rot1code = "s_lshl_b32 s26, s3, 1\ns_and_b32 s30, s3, 4\ns_add_u32 s26, s26, s30\ns_and_b32 s26, s26, 7"
    elif rot1 == "r2":
        rot1code = "s_add_u32 s26, s5, s4\ns_and_b32 s26, s26, 1\ns_lshl_b32 s26, s26, 2\ns_lshr_b32 s30, s3, 2\ns_add_u32 s30, s30, s3\ns_and_b32 s30, s30, 1\ns_lshl_b32 s30, s30, 1\ns_add_u32 s26, s26, s30"
    else:
        rot1code = "s_lshl_b32 s26, s5, 1\ns_add_u32 s26, s26, s4\ns_and_b32 s26, s26, 7"
    a("s_load_dwordx16 s[8:23], s[0:1], 0")
    stamp(0)
    a("s_cmp_ge_u32 s2, 256")
    a("s_cbranch_scc1 L_END")
    a("""v_lshrrev_b32 v2, 6, v0
    v_and_b32 v1, 63, v0
    s_and_b32 s3, s2, 7
    v_readfirstlane_b32 s7, v2
    s_bfe_u32 s4, s2, 0x30003
    s_lshr_b32 s5, s2, 6
    s_and_b32 s6, s3, 3
    s_lshl_b32 s30, s5, 2
    s_add_u32 s6, s6, s30
    s_lshr_b32 s24, s3, 2
    s_lshl_b32 s24, s24, 3
    s_add_u32 s24, s24, s4
    ROT1
    s_and_b32 s28, s7, 3
    v_and_b32 v2, 3, v2
    s_cmp_ge_u32 s7, 4
    s_cbranch_scc1 L_LOADER""".replace("ROT1", rot1code))
    vLane = 1; vQ = 2
    R = RegAlloc(3)
    t0 = R.alloc(); t1 = R.alloc(); t2 = R.alloc()
    vAW2 = R.alloc(6); vOH = R.alloc(); vRW = R.alloc(3); vRR = R.alloc(); vOO = R.alloc(); vN = R.alloc(); vNA = R.alloc(); vFA = R.alloc()
    vF = R.alloc(4)
    vb2 = R.alloc(4, 2)
    base = R.n
    R1 = RegAlloc(base)
    vPF = R1.alloc(4); vAX = R1.alloc(8); vAW = R1.alloc(2); vOB = R1.alloc(); vC0 = R1.alloc(2, 2)
    acc = R1.alloc(48, 4)
    fx = [R1.alloc(4, 4) for _ in range(3)]
    fw = [R1.alloc(12, 4) for _ in range(3)]
    vb = fw[0]
    T = R1.alloc(8, 4); O = [R1.alloc(4, 4) for _ in range(6)]
    RL = RegAlloc(base)
    vOX = RL.alloc(4); vOW = RL.alloc(3); vOW2 = RL.alloc(4)
    R2 = RegAlloc(max(R1.n, RL.n))
    acc2 = R2.alloc(32, 4)
    fw2 = [R2.alloc(8, 4) for _ in range(2)]
    st0 = R2.alloc(16, 4)
    lastbuf = acc2
    R2b = RegAlloc(acc)
    fh = [R2b.alloc(4, 4) for _ in range(22)]
    assert R2b.n <= T
    nv = R2.n

    def common_setup():
        a("""s_lshl_b32 s25, s5, 3
        s_add_u32 s25, s25, s3
        s_mul_i32 s27, s5, 3
        s_lshl_b32 s30, s4, 2
        s_add_u32 s27, s27, s30
        s_mul_i32 s30, s27, 187
        s_lshr_b32 s30, s30, 11
        s_mul_i32 s30, s30, 11
        s_sub_u32 s27, s27, s30
        s_lshr_b32 s29, s7, 2""")
        if rot2 == 0:
            a("s_mov_b32 s27, 0")
        elif rot2 == "xcd":
            a("s_mov_b32 s27, s3")
        a(f"""v_lshrrev_b32 v{t0}, 5, v{vLane}
        v_bfe_u32 v{t1}, v{vLane}, 2, 2
        v_lshl_add_u32 v{t0}, v{t0}, 2, v{t1}
        v_lshlrev_b32 v{t0}, 7, v{t0}
        v_bfe_u32 v{t1}, v{vLane}, 3, 1
        v_lshlrev_b32 v{t1}, 1, v{t1}
        v_bfe_u32 v{t2}, v{vLane}, 4, 1
        v_or_b32 v{t1}, v{t1}, v{t2}
        v_xor_b32 v{t1}, v{t1}, v{vQ}
        v_lshl_add_u32 v{t0}, v{t1}, 5, v{t0}
        v_and_b32 v{t1}, 3, v{vLane}
        v_lshl_add_u32 v{t0}, v{t1}, 3, v{t0}
        v_lshl_add_u32 v{vAW2}, v{vQ}, 12, v{t0}
        v_xor_b32 v{vAW2+1}, 64, v{vAW2}
        v_add_u32 v{vAW2+2}, 65536, v{vAW2}
        v_add_u32 v{vAW2+3}, 65536, v{vAW2+1}
        v_add_u32 v{vAW2+4}, 131072, v{vAW2}
        v_add_u32 v{vAW2+5}, 131072, v{vAW2+1}
        v_lshlrev_b32 v{vOH}, 4, v{vLane}""")
        a(f"s_mul_i32 s30, s29, 24576")
        a(f"v_add_u32 v{t0}, s30, v{vOH}")
        for o in range(1, 4):
            a(f"v_xor_b32 v{t1}, {o}, v{vQ}")
            a(f"v_mul_u32_u24 v{t1}, 6144, v{t1}")
            a(f"v_add_u32 v{vRW+o-1}, v{t1}, v{t0}")
        a(f"v_mul_u32_u24 v{t1}, 6144, v{vQ}")
        a(f"v_add_u32 v{vRR}, v{t1}, v{t0}")
        a(f"""v_and_b32 v{t0}, 31, v{vLane}
        v_lshlrev_b32 v{vNA}, 2, v{t0}
        v_lshrrev_b32 v{t1}, 5, v{vLane}
        v_lshlrev_b32 v{t1}, 4, v{t1}
        v_lshl_add_u32 v{vOO}, v{t0}, 10, v{t1}
        v_and_b32 v{vFA}, 15, v{vLane}
        v_lshlrev_b32 v{vFA}, 2, v{vFA}""")
        a("s_lshl_b32 s30, s25, 1")
        a("s_add_u32 s30, s30, s29")
        a(f"s_mul_i32 s68, s30, {MBS}")
        a("s_lshl_b32 s69, s4, 7")
        a("s_lshl_b32 s31, s28, 5")
        a("s_add_u32 s69, s69, s31")
        a("s_lshl_b32 s67, s30, 15")
        a("s_add_u32 s67, s67, s69")
    def common_srds():
        a(f"""s_mov_b32 s40, s22
        s_mov_b32 s41, s23
        s_mov_b32 s42, {H_BYTES}
        s_mov_b32 s43, 0x20000
        s_mov_b32 s44, s20
        s_mov_b32 s45, s21
        s_mov_b32 s46, 256
        s_mov_b32 s47, 0x20000
        s_add_u32 s52, s18, s67
        s_addc_u32 s53, s19, 0
        s_sub_u32 s54, 2097152, s67
        s_mov_b32 s55, 0x20000""")
    def b2_load():
        a("""s_mov_b32 s32, s16
        s_mov_b32 s33, s17
        s_mov_b32 s34, 1024
        s_mov_b32 s35, 0x20000""")
        a(f"v_lshrrev_b32 v{t1}, 5, v{vLane}")
        a(f"v_lshlrev_b32 v{t1}, 3, v{t1}")
        a(f"buffer_load_dwordx2 {vr(vb2,2)}, v{t1}, s[32:35], s69 offen")
        a(f"buffer_load_dwordx2 {vr(vb2+2,2)}, v{t1}, s[32:35], s69 offen offset:16")
    def stage0():
        k = w2_lds(0) >> 16; off = w2_lds(0) - (k << 16)
        for s in range(2):
            for p in range(2):
                for q in range(2):
                    a(f"ds_read_b64_tr_b16 {vr(st0+8*s+4*p+2*q,2)}, v{vAW2+2*k+p} offset:{off+s*2048+q*1024}")
    def ph2_scalars():
        a(f"s_add_u32 s63, s68, {MB_BYTES}")
        a("s_add_u32 s36, s22, s68")
        a("s_addc_u32 s37, s23, 0")
        a(f"s_mov_b32 s38, {MB_BYTES}")
        a("s_mov_b32 s39, 0x20000")
        a("s_mov_b32 s60, 0x00f8000f")
        a("s_mov_b32 s61, 0x78000780")
        a("s_lshl_b32 s31, s28, 4")
        a("s_lshr_b64 s[60:61], s[60:61], s31")
        a("s_and_b32 s60, s60, 0xffff")
    def ph2_init():
        a(f"s_mul_i32 s64, s28, {11*2048}")
        a(f"s_add_u32 s65, s64, {11*2048}")
        a("s_lshl_b32 s66, s27, 11")
        a("s_add_u32 s66, s66, s64")
        for i in range(8, 32):
            a(f"v_mov_b32 v{acc2+i}, 0")
        for i in range(4):
            a(f"v_lshlrev_b32 v{acc2+2*i}, 16, v{vb2+i}")
            a(f"v_and_b32 v{acc2+2*i+1}, 0xffff0000, v{vb2+i}")
    def poll_issue(k):
        a(f"buffer_load_dword v{vF+k}, v{vFA}, s[40:43], s63 offen sc1")

    a.c("compute waves")
    if pfx:
        a(f"v_lshrrev_b32 v{vPF+1}, 4, v{vLane}")
        a("s_add_u32 s30, s26, 2")
        a(f"v_add_u32 v{t1}, s30, v{vPF+1}")
        a(f"v_and_b32 v{t1}, 7, v{t1}")
        a(f"v_cmp_le_u32 vcc, 2, v{vPF+1}")
        a(f"v_and_b32 v{t2}, 15, v{vLane}")
        a(f"v_mov_b32 v{vPF}, 3")
        a(f"v_cndmask_b32 v{t1}, v{t1}, v{vPF}, vcc")
        a(f"v_lshlrev_b32 v{t1}, 7, v{t1}")
        a(f"v_lshl_add_u32 v{vPF}, v{t2}, 10, v{t1}")
        a("s_lshl_b32 s30, s6, 17")
        a("s_lshl_b32 s31, s4, 14")
        a("s_add_u32 s30, s30, s31")
        a("s_mov_b32 s50, 16384\ns_mov_b32 s51, 0x20000")
        a("s_cmp_lg_u32 s7, 3")
        a("s_cbranch_scc1 L_NOPFX")
        a("s_waitcnt lgkmcnt(0)")
        a("s_add_u32 s48, s8, s30\ns_addc_u32 s49, s9, 0")
        a("s_mov_b32 exec_hi, 0xffff")
        a(f"buffer_load_dword v{vPF+1}, v{vPF}, s[48:51], 0 offen")
        a("s_mov_b32 exec_hi, -1")
        a.label("L_NOPFX")
    common_setup()
    a(f"""v_and_b32 v{t0}, 31, v{vLane}
    v_lshrrev_b32 v{t1}, 1, v{t0}
    v_and_b32 v{t1}, 7, v{t1}
    v_lshrrev_b32 v{t2}, 5, v{vLane}
    v_xor_b32 v{t1}, v{t1}, v{t2}
    v_lshlrev_b32 v{t0}, 7, v{t0}
    v_lshl_add_u32 v{t0}, v{vQ}, 12, v{t0}""")
    for t in range(4):
        a(f"v_xor_b32 v{vAX+t}, {2*t}, v{t1}")
        a(f"v_lshl_add_u32 v{vAX+t}, v{vAX+t}, 4, v{t0}")
        a(f"v_add_u32 v{vAX+4+t}, {2*SLOT}, v{vAX+t}")
    for i in range(12): a(f"v_mov_b32 v{fw[1]+i}, 0")
    a(f"v_mov_b32 v{fw[0]+2}, 0")
    a(f"v_mov_b32 v{fw[0]+3}, 0")
    a(f"v_mul_u32_u24 v{fw[1]+4}, 0x3f80, v{t2}")
    a(f"v_xor_b32 v{fw[1]}, 0x3f80, v{fw[1]+4}")
    a(f"v_mov_b32 v{fw[1]+9}, v{fw[1]}")
    a(f"""v_lshlrev_b32 v{vOB}, 3, v{t2}
    v_bfe_u32 v{t0}, v{vLane}, 2, 2
    v_add_u32 v{t0}, v{t0}, v{vOB}
    v_lshlrev_b32 v{vOB}, 1, v{vLane}
    v_mul_u32_u24 v{t0}, 192, v{t0}
    v_bfe_u32 v{t1}, v{vLane}, 4, 1
    v_lshl_add_u32 v{t0}, v{t1}, 5, v{t0}
    v_and_b32 v{t1}, 3, v{vLane}
    v_lshl_add_u32 v{t0}, v{t1}, 3, v{t0}
    v_add_u32 v{vAW}, 16384, v{t0}
    v_add_u32 v{vAW+1}, {2*SLOT+16384}, v{t0}
    v_mov_b32 v{vC0}, 0x{f32bits(C0):08x}
    v_mov_b32 v{vC0+1}, 0x{f32bits(C0):08x}
    s_mov_b32 s56, 0x{f32bits(C1):08x}
    s_mov_b32 s57, 0x{f32bits(C1):08x}""")
    a(f"v_bfe_u32 v{t0}, v{vLane}, 4, 1")
    a(f"v_mul_u32_u24 v{t0}, {MBS}, v{t0}")
    a(f"v_add_u32 v{t0}, v{t0}, v{vFA}")
    a("s_mul_i32 s58, s24, 192")
    a("s_lshl_b32 s59, s6, 2")
    a("s_add_u32 s59, s59, s7")
    a(f"s_mul_i32 s62, s59, {MBS}")
    a("s_mul_i32 s61, s24, 6144")
    a("s_add_u32 s64, s62, s61")
    a("s_add_u32 s65, s64, 4096")
    a(f"s_add_u32 s66, s62, {MB_BYTES+1024}")
    a("s_lshl_b32 s63, s24, 2")
    a("s_add_u32 s62, s62, s63")
    a(f"s_add_u32 s62, s62, {MB_BYTES}")
    a(f"s_mul_i32 s63, s25, {2*MBS}")
    a(f"s_add_u32 s63, s63, {MB_BYTES}")
    a("s_waitcnt lgkmcnt(0)")
    stamp(1)
    common_srds()
    a(f"""s_mov_b32 s32, s12
    s_mov_b32 s33, s13
    s_mov_b32 s34, 2752
    s_mov_b32 s35, 0x20000""")
    bA = fw[0]; bB = fw[1]
    a(f"buffer_load_ushort v{bA}, v{vOB}, s[32:35], s58 offen")
    a(f"buffer_load_ushort v{bA+1}, v{vOB}, s[32:35], s58 offen offset:128")
    a("s_or_b32 s61, s4, s7")
    a("s_cmp_lg_u32 s61, 0")
    a("s_cbranch_scc1 L_NOLEAD")
    a(f"buffer_load_dword v{vF}, v{t0}, s[40:43], s63 offen sc1")
    a("s_waitcnt vmcnt(0)")
    a(f"v_lshrrev_b32 v{t1}, v{vLane}, v{vF}")
    a(f"v_and_b32 v{t1}, 1, v{t1}")
    a(f"v_cmp_eq_u32 vcc, 0, v{t1}")
    a("s_lshl_b32 s30, s25, 2")
    a(f"v_mov_b32 v{t2}, s30")
    a("s_or_b32 s31, vcc_lo, 0x80000000")
    a(f"v_mov_b32 v{t1}, s31")
    a("s_mov_b64 exec, 1")
    a(f"buffer_store_dword v{t1}, v{t2}, s[44:47], 0 offen sc1")
    a("s_mov_b64 exec, -1")
    a("s_branch L_LEAD_DONE")
    a.label("L_NOLEAD")
    a("s_waitcnt vmcnt(0)")
    a.label("L_LEAD_DONE")
    for p in range(3):
        a(f"v_mfma_f32_32x32x16_bf16 {vr(acc+16*p,16)}, {vr(bA,4)}, {vr(bB+4*p,4)}, 0")
    def rd(c, t, s):
        slot = c % 4
        hi = slot >> 1; off = (slot & 1) * SLOT
        l = [f"ds_read_b128 {vr(fx[s],4)}, v{vAX+4*hi+t} offset:{off}"]
        for p in range(3):
            for q in range(2):
                l.append(f"ds_read_b64_tr_b16 {vr(fw[s]+4*p+2*q,2)}, v{vAW+hi} offset:{off+t*3072+q*768+p*64}")
        return l
    def mf(s):
        return [f"v_mfma_f32_32x32x16_bf16 {vr(acc+16*p,16)}, {vr(fw[s]+4*p,4)}, {vr(fx[s],4)}, {vr(acc+16*p,16)}" for p in range(3)]
    def inter(m, r):
        for x in [m[0], r[0], r[1], r[2], m[1], r[3], r[4], m[2], r[5], r[6]]:
            a(x)
    def hstore(idx):
        so = "s64" if idx < 4 else "s65"
        return f"buffer_store_dwordx4 {vr(O[idx],4)}, v{vOH}, s[40:43], {so} offen offset:{(idx%4)*1024} sc1"
    for c in range(8):
        fstamp(2*c)
        a("s_barrier")
        fstamp(2*c+1)
        if c == 0: stamp(2)
        if c == 7:
            stamp(3)
            if lastp: break
        if c == 6:
            a(f"buffer_load_dword v{vN}, v{vNA}, s[44:47], 0 offen sc1")
            b2_load()
        for x in rd(c, 0, (4*c) % 3): a(x)
        if c >= 1:
            inter(mf((4*c - 1) % 3), rd(c, 1, (4*c+1) % 3))
        else:
            for x in rd(c, 1, (4*c+1) % 3): a(x)
        a("s_waitcnt lgkmcnt(7)")
        inter(mf((4*c) % 3), rd(c, 2, (4*c+2) % 3))
        a("s_waitcnt lgkmcnt(7)")
        inter(mf((4*c+1) % 3), rd(c, 3, (4*c+3) % 3))
        a("s_waitcnt lgkmcnt(7)")
        for x in mf((4*c+2) % 3): a(x)
        a("s_waitcnt lgkmcnt(0)")
        if c == 6 and lastp:
            for x in mf(27 % 3): a(x)
    if not lastp:
        for x in mf(31 % 3): a(x)
        stamp(4)
        a("s_cmp_eq_u32 s24, 15")
        a("s_cbranch_scc1 L_NOFLAG")
        a("s_nop 7")
        pstart = 0
    else:
        LX = lambda t: lastbuf + 4*t
        LW = lambda p, t: lastbuf + 16 + 16*p + 4*t
        def rx(t): return f"ds_read_b128 {vr(LX(t),4)}, v{vAX+4+t} offset:{SLOT}"
        def rw(p, t): return [f"ds_read_b64_tr_b16 {vr(LW(p,t)+2*q,2)}, v{vAW+1} offset:{SLOT+t*3072+q*768+p*64}" for q in range(2)]
        def m(p, t): return f"v_mfma_f32_32x32x16_bf16 {vr(acc+16*p,16)}, {vr(LW(p,t),4)}, {vr(LX(t),4)}, {vr(acc+16*p,16)}"
        for t in range(4):
            a(rx(t))
            for x in rw(0, t): a(x)
        a("s_waitcnt lgkmcnt(9)"); a(m(0, 0))
        for x in rw(1, 0) + rw(1, 1): a(x)
        a("s_waitcnt lgkmcnt(10)"); a(m(0, 1))
        for x in rw(1, 2) + rw(1, 3): a(x)
        a("s_waitcnt lgkmcnt(11)"); a(m(0, 2))
        for x in rw(2, 0) + rw(2, 1): a(x)
        a("s_waitcnt lgkmcnt(12)"); a(m(0, 3))
        for x in rw(2, 2): a(x)
        a("s_waitcnt lgkmcnt(12)"); a(m(1, 0))
        for x in rw(2, 3): a(x)
        a("s_waitcnt lgkmcnt(8)"); a(m(1, 1))
        stamp(4)
        a("s_cmp_eq_u32 s24, 15")
        a("s_cbranch_scc1 L_NOFLAG0")
        a("s_nop 1")
        rest = [m(1, 2), m(1, 3), "W0", m(2, 0), m(2, 1), m(2, 2), m(2, 3)]
        g = gelu8_sc(acc, T, O[0], 56, vC0)
        cost = 0; nxt = 24
        for ins in g:
            a(ins)
            cost += 8 if ("exp" in ins or "rcp" in ins) else 4
            if cost >= nxt and rest:
                x = rest.pop(0)
                if x == "W0":
                    a("s_waitcnt lgkmcnt(0)"); x = rest.pop(0)
                a(x); cost += 0; nxt = cost + 24
        assert not rest
        a(hstore(0))
        for ins in gelu8_pk(acc + 8, T, O[1], 56, vC0): a(ins)
        a(hstore(1))
        pstart = 1
    for p in range(pstart, 3):
        if p == 1:
            a("s_cmp_eq_u32 s24, 14")
            a("s_cbranch_scc1 L_STORED")
        for e in range(2):
            for ins in gelu8_pk(acc + 16*p + 8*e, T, O[2*p+e], 56, vC0): a(ins)
            a(hstore(2*p+e))
    a.label("L_STORED")
    stamp(5)
    a("s_lshr_b32 s30, s59, 1")
    a("s_mov_b32 s67, 0")
    a(f"v_mov_b32 v{t2}, s62")
    ph2_scalars()
    poll_issue(0)
    a("s_waitcnt vmcnt(3)")
    ph2_init()
    a("s_waitcnt vmcnt(1)")
    a.label("L_PN")
    a(f"v_readlane_b32 s31, v{vN}, s30")
    a("s_add_u32 s67, s67, 1")
    a("s_nop 1")
    a("s_cmp_lg_u32 s31, 0")
    a("s_cbranch_scc1 L_PN_OK")
    a("s_cmp_gt_u32 s67, 0x100000")
    a("s_cbranch_scc1 L_PN_OK")
    a(f"buffer_load_dword v{vN}, v{vNA}, s[44:47], 0 offen sc1")
    a("s_waitcnt vmcnt(0)")
    a("s_branch L_PN")
    a.label("L_PN_OK")
    stamp(6)
    a(f"v_mov_b32 v{t1}, s31")
    a("s_mov_b64 exec, 1")
    a(f"buffer_store_dword v{t1}, v{t2}, s[40:43], 0 offen sc1")
    a("s_mov_b64 exec, -1")
    a("s_branch L_C2")
    a.label("L_NOFLAG0")
    a("s_waitcnt lgkmcnt(0)")
    a.label("L_NOFLAG")
    ph2_scalars()
    poll_issue(0)
    a("s_waitcnt vmcnt(0)")
    ph2_init()
    a.label("L_C2")
    a("s_barrier")
    poll_issue(1)
    stage0()
    a("s_waitcnt vmcnt(2) lgkmcnt(0)")
    a("s_barrier")
    a("s_branch L_PHASE2")

    a.label("L_LOADER")
    a(f"""v_lshrrev_b32 v{t0}, 3, v{vLane}
    v_lshl_add_u32 v{t0}, v{vQ}, 5, v{t0}
    v_lshlrev_b32 v{t0}, 10, v{t0}
    v_lshrrev_b32 v{t1}, 4, v{vLane}
    v_and_b32 v{t2}, 7, v{vLane}
    v_xor_b32 v{t1}, v{t1}, v{t2}
    v_lshl_add_u32 v{vOX}, v{t1}, 4, v{t0}
    v_xor_b32 v{t1}, 4, v{t1}
    v_lshl_add_u32 v{vOX+1}, v{t1}, 4, v{t0}
    v_add_u32 v{vOX+1}, {8192-1024}, v{vOX+1}
    v_add_u32 v{vOX+2}, {2*(8192-1024)}, v{vOX}
    v_add_u32 v{vOX+3}, {2*(8192-1024)}, v{vOX+1}
    v_mul_u32_u24 v{t0}, 192, v{vQ}
    v_add_u32 v{t0}, v{t0}, v{vLane}""")
    for j in range(3):
        if j:
            a(f"v_add_u32 v{t0}, 64, v{t0}")
        a(f"v_mul_u32_u24 v{t1}, 43691, v{t0}")
        a(f"v_lshrrev_b32 v{t1}, 19, v{t1}")
        a(f"v_mul_u32_u24 v{t2}, 12, v{t1}")
        a(f"v_sub_u32 v{t2}, v{t0}, v{t2}")
        a(f"v_mul_u32_u24 v{t1}, 2752, v{t1}")
        a(f"v_lshl_add_u32 v{vOW+j}, v{t2}, 4, v{t1}")
        if j:
            a(f"v_subrev_u32 v{vOW+j}, {1024*j}, v{vOW+j}")
    a("s_lshl_b32 s56, s28, 12")
    a("s_mul_i32 s57, s28, 3072")
    a("s_add_u32 s57, s57, 16384")
    a("s_mul_i32 s58, s24, 192")
    a("s_lshl_b32 s59, s6, 17")
    a("s_sub_u32 s38, 1409024, s58")
    a("s_cmp_eq_u32 s24, 15")
    a("s_cselect_b32 s38, 0, s38")
    a("s_cselect_b32 s34, 0, 131072")
    a("s_mov_b32 s35, 0x20000")
    a("s_mov_b32 s39, 0x20000")
    a("s_mov_b32 s62, s26")
    a("s_waitcnt lgkmcnt(0)")
    stamp(1)
    a("""s_add_u32 s32, s8, s59
    s_addc_u32 s33, s9, 0
    s_add_u32 s36, s10, s58
    s_addc_u32 s37, s11, 0""")
    def dma1(c):
        slot = c % 4
        a(f"s_add_u32 m0, s56, {slot*SLOT}")
        a("s_lshl_b32 s63, s62, 7")
        for j in range(4):
            a(f"buffer_load_dwordx4 v{vOX+j}, s[32:35], s63 offen offset:{1024*j} lds")
        a(f"s_add_u32 m0, s57, {slot*SLOT}")
        a("s_mul_i32 s63, s62, 176128")
        for j in range(3):
            a(f"buffer_load_dwordx4 v{vOW+j}, s[36:39], s63 offen offset:{1024*j} lds")
        a("s_add_u32 s62, s62, 1")
        a("s_and_b32 s62, s62, 7")
    dma1(0); dma1(1)
    common_setup()
    common_srds()
    a(f"""v_lshrrev_b32 v{t0}, 3, v{vLane}
    v_bfe_u32 v{t1}, v{vLane}, 4, 1
    v_lshlrev_b32 v{t1}, 2, v{t1}
    v_and_b32 v{t2}, 7, v{vLane}
    v_xor_b32 v{t1}, v{t1}, v{t2}
    v_lshlrev_b32 v{t0}, 10, v{t0}
    v_lshl_add_u32 v{vOW2}, v{t1}, 4, v{t0}""")
    for j in range(1, 4):
        a(f"v_add_u32 v{vOW2+j}, {j*(8192-1024)}, v{vOW2}")
    a("s_lshl_b32 s30, s4, 7")
    a("""s_add_u32 s48, s14, s30
    s_addc_u32 s49, s15, 0
    s_sub_u32 s50, 1409024, s30
    s_mov_b32 s51, 0x20000""")
    a(f"s_mul_i32 s64, s28, {11*32768}")
    a(f"s_add_u32 s65, s64, {11*32768}")
    a("s_lshl_b32 s66, s27, 15")
    a("s_add_u32 s66, s66, s64")
    dma1(2)
    def dma2(pos):
        a(f"s_add_u32 m0, s56, {w2_lds(pos)}")
        a("s_nop 0")
        for j in range(4):
            a(f"buffer_load_dwordx4 v{vOW2+j}, s[48:51], s66 offen offset:{1024*j} lds")
        a("s_add_u32 s66, s66, 32768")
        a("s_cmp_eq_u32 s66, s65")
        a("s_cselect_b32 s66, s64, s66")
    if lsp:
        a("s_lshl_b32 s30, s2, 2")
        a("s_add_u32 s30, s30, s28")
        a("s_mul_i32 s30, s30, 1376")
        a("s_and_b32 s30, s30, 0xffffffc0")
        a("s_add_u32 s58, s14, s30")
        a("s_addc_u32 s59, s15, 0")
        a("s_lshr_b32 s30, s2, 3")
        a("s_mul_i32 s30, s30, 43")
        a("s_mul_i32 s31, s28, 11")
        a("s_add_u32 s30, s30, s31")
        a("s_min_u32 s30, s30, 1365")
        a("s_lshl_b32 s30, s30, 10")
        a("s_add_u32 s60, s14, s30")
        a("s_addc_u32 s61, s15, 0")
        lds_ = []
        for i in range(22):
            if sp3: lds_.append(f"s_load_dword s31, s[60:61], {(i//2)*1024+384+(i&1)*64}")
            lds_.append(f"s_load_dword s31, s[58:59], {min(i*64, 1372)}")
        per = (len(lds_) + len(lsp) - 1) // len(lsp)
    def lspf(k):
        for x in lds_[k*per:(k+1)*per]: a(x)
    n5, n6 = w2sched
    allowed = [14, 14, 14, 14, 14, 14, 7 + 4*n5, 4*(n5+n6)]
    pos = 0
    for i in range(8):
        fstamp(2*i)
        a(f"s_waitcnt vmcnt({allowed[i]})")
        fstamp(2*i+1)
        a("s_barrier")
        if i == 0: stamp(2)
        if i == 7: stamp(3)
        if lsp and i in lsp: lspf(lsp.index(i))
        if i + 3 <= 7:
            dma1(i + 3)
        else:
            n = {5: n5, 6: n6, 7: 8 - n5 - n6}[i]
            if i == 7: b2_load()
            for _ in range(n):
                if i == 7 and thr is not None: a(f"s_waitcnt vmcnt({thr})")
                dma2(pos); pos += 1
    stamp(4)
    a("s_waitcnt lgkmcnt(0)")
    a(f"buffer_load_dword v{vN}, v{vNA}, s[44:47], 0 offen sc1")
    ph2_scalars()
    poll_issue(0)
    for i in range(8, 32):
        a(f"v_mov_b32 v{acc2+i}, 0")
    a(f"s_waitcnt vmcnt(0)")
    for i in range(4):
        a(f"v_lshlrev_b32 v{acc2+2*i}, 16, v{vb2+i}")
        a(f"v_and_b32 v{acc2+2*i+1}, 0xffff0000, v{vb2+i}")
    stamp(5)
    a("s_barrier")
    stamp(6)
    stage0()
    dma2(8); dma2(9)
    a("s_waitcnt lgkmcnt(0)")
    a("s_barrier")
    dma2(10)
    poll_issue(1)
    a(f"s_mul_i32 s64, s28, {11*2048}")
    a(f"s_add_u32 s65, s64, {11*2048}")
    a("s_lshl_b32 s66, s27, 11")
    a("s_add_u32 s66, s66, s64")

    a.label("L_PHASE2")
    stamp(7)
    a("s_mov_b32 s67, 0")
    a(f"v_readlane_b32 s62, v{vN}, s25")
    a("s_nop 3")
    a("s_cmp_lg_u32 s62, 0")
    a("s_cbranch_scc1 L_CN_OK")
    a.label("L_CN")
    a(f"buffer_load_dword v{vN}, v{vNA}, s[44:47], 0 offen sc1")
    a("s_waitcnt vmcnt(0)")
    a(f"v_readlane_b32 s62, v{vN}, s25")
    a("s_add_u32 s67, s67, 1")
    a("s_nop 1")
    a("s_cmp_lg_u32 s62, 0")
    a("s_cbranch_scc1 L_CN_OK")
    a("s_cmp_le_u32 s67, 0x100000")
    a("s_cbranch_scc1 L_CN")
    a.label("L_CN_OK")
    a(f"v_cmp_eq_u32 vcc, s62, v{vF}")
    a("s_nop 1")
    a("s_and_b32 s31, vcc_lo, s60")
    a("s_cmp_eq_u32 s31, s60")
    a("s_cbranch_scc1 L_GO")
    a.label("L_POLL")
    a(f"s_waitcnt vmcnt(0)")
    a(f"v_cmp_eq_u32 vcc, s62, v{vF+1}")
    a("s_add_u32 s67, s67, 1")
    a("s_nop 0")
    a("s_and_b32 s31, vcc_lo, s60")
    a("s_cmp_eq_u32 s31, s60")
    a("s_cbranch_scc1 L_GO")
    if psleep: a(f"s_sleep {psleep}")
    poll_issue(1)
    a("s_cmp_le_u32 s67, 0x100000")
    a("s_cbranch_scc1 L_POLL")
    a.label("L_GO")
    stamp(8)
    def hload(s):
        a(f"buffer_load_dwordx4 {vr(fh[s],4)}, v{vOH}, s[36:39], s66 offen offset:{(s&1)*1024} sc1")
        if s & 1:
            a("s_add_u32 s66, s66, 2048")
            a("s_cmp_eq_u32 s66, s65")
            a("s_cselect_b32 s66, s64, s66")
    for s in range(PF):
        hload(s)
    def wreads(s):
        pos = s >> 1
        off = w2_lds(pos) + (s & 1) * 2048
        k = off >> 16
        off -= k << 16
        return [f"ds_read_b64_tr_b16 {vr(fw2[s&1]+4*p+2*q,2)}, v{vAW2+2*k+p} offset:{off+q*1024}" for p in range(2) for q in range(2)]
    last = PF - 1
    for s in range(22):
        if s + 1 == 16:
            a("s_waitcnt lgkmcnt(0)")
            a("s_barrier")
        if 2 <= s + 1 < 22:
            for x in wreads(s + 1): a(x)
        a(f"s_waitcnt vmcnt({last - s})" + (f" lgkmcnt({4 if s + 1 < 22 else 0})" if s >= 2 else ""))
        if s == 0: stamp(9)
        if s == 21: stamp(10)
        wf = st0 + 8 * s if s < 2 else fw2[s & 1]
        for p in range(2):
            a(f"v_mfma_f32_32x32x16_bf16 {vr(acc2+16*p,16)}, {vr(wf+4*p,4)}, {vr(fh[s],4)}, {vr(acc2+16*p,16)}")
        if s + PF < 22:
            hload(s + PF); last = s + PF
    stamp(11)
    a("s_nop 10")
    for o in range(1, 4):
        if o == 2: a("s_nop 1")
        for e in range(2):
            a(f"ds_write_b128 v{vRW+o-1}, {vr(acc2+8*o+4*e,4)} offset:{(o-1)*2048+e*1024}")
    a("s_waitcnt lgkmcnt(0)")
    a("s_barrier")
    stamp(12)
    rdm = fh[0]
    for o in range(3):
        for e in range(2):
            a(f"ds_read_b128 {vr(rdm+8*o+4*e,4)}, v{vRR} offset:{o*2048+e*1024}")
    for o in range(3):
        a(f"s_waitcnt lgkmcnt({4-2*o})")
        for i in range(0, 8, 2):
            a(f"v_pk_add_f32 {vr(acc2+i,2)}, {vr(acc2+i,2)}, {vr(rdm+8*o+i,2)}")
    od = fw2[0]
    for i in range(4):
        a(f"v_cvt_pk_bf16_f32 v{od+i}, v{acc2+2*i}, v{acc2+2*i+1}")
    a("s_nop 1")
    a(f"v_permlane32_swap_b32 v{od}, v{od+2}")
    a(f"v_permlane32_swap_b32 v{od+1}, v{od+3}")
    a(f"buffer_store_dwordx4 {vr(od,4)}, v{vOO}, s[52:55], 0 offen {out_aux}")
    if prof:
        stamp(13)
        a("s_waitcnt vmcnt(0)")
        stamp(14)
        a("s_waitcnt lgkmcnt(0)")
        if prof == 1:
            a(f"s_mov_b32 s{SB+30}, s67")
            a(f"s_mov_b32 s{SB+31}, 0")
        a(f"s_add_u32 s44, s22, {128<<20}")
        a(f"s_addc_u32 s45, s23, 0")
        a("s_mov_b32 s46, 0x1000000")
        a("s_mov_b32 s47, 0x20000")
        a("s_lshl_b32 s48, s2, 3")
        a("s_add_u32 s48, s48, s7")
        a(f"s_mul_i32 s48, s48, {NST*8}")
        a("v_mov_b32 v1, 0")
        for i in range(NST):
            a(f"v_mov_b32 v2, s{SB+2*i}")
            a(f"v_mov_b32 v3, s{SB+2*i+1}")
            a(f"buffer_store_dwordx2 v[2:3], v1, s[44:47], s48 offen offset:{8*i}")
            a("s_nop 1")
    a.label("L_END")
    a("s_endpgm")
    return a.text(), nv

def build(out, **kw):
    k, nv = gen(**kw)
    s = HEADER + "; @launch grid=(256,1,1) block=(512,1,1) lds=163840\n"
    s += '.amdgcn_target "amdgcn-amd-amdhsa--gfx950"\n.text\n'
    s += kernel_start(NAME) + k
    s += '.section .rodata,"a"\n' + kernel_desc(NAME, nv, 102)
    open(out, "w").write(s)
    print(out, "vgprs", nv)

if __name__ == "__main__":
    build("v7.s"); build("v7p.s", prof=1); build("v7f.s", prof=2)
    build("v7p_nosp3.s", prof=1, sp3=False, lsp=(2,3)); build("v7p_nolsp.s", prof=1, lsp=None); build("v7p_cu.s", prof=1, rot1='cu'); build("v7p_e.s", prof=1, lsp=(0,1,2,3))
    build("v7p_w21.s", prof=1, w2sched=(2,1), thr=8)
```

```python
import sys, math
from asmlib import *

MB_BYTES = 86 * 1024
MBS = 88 * 1024
H_BYTES = 64 * MBS
C0 = -2.0 * math.sqrt(2.0 / math.pi) * math.log2(math.e)
C1 = C0 * 0.044715
NAME = "standalone__dense_activation_gelu__prompt_kernel"
SLOT = 28672
DBASE = 4 * SLOT
NST = 16

def gelu8_pk(acc, T, O, sC1, vC0):
    l = []
    l += [f"v_pk_mul_f32 {vr(T+i,2)}, {vr(acc+i,2)}, {vr(acc+i,2)}" for i in range(0, 8, 2)]
    l += [f"v_pk_fma_f32 {vr(T+i,2)}, {vr(T+i,2)}, {sr(sC1,2)}, {vr(vC0,2)}" for i in range(0, 8, 2)]
    l += [f"v_pk_mul_f32 {vr(T+i,2)}, {vr(T+i,2)}, {vr(acc+i,2)}" for i in range(0, 8, 2)]
    l += [f"v_exp_f32 {vr(T+i)}, {vr(T+i)}" for i in range(8)]
    l += [f"v_pk_add_f32 {vr(T+i,2)}, {vr(T+i,2)}, 1.0 op_sel_hi:[1,0]" for i in range(0, 8, 2)]
    l += [f"v_rcp_f32 {vr(T+i)}, {vr(T+i)}" for i in range(8)]
    l += [f"v_pk_mul_f32 {vr(T+i,2)}, {vr(T+i,2)}, {vr(acc+i,2)}" for i in range(0, 8, 2)]
    l += [f"v_cvt_pk_bf16_f32 {vr(O+i//2)}, {vr(T+i)}, {vr(T+i+1)}" for i in range(0, 8, 2)]
    return l
def gelu8_sc(acc, T, O, sC1, vC0):
    l = []
    l += [f"v_mul_f32 v{T+i}, v{acc+i}, v{acc+i}" for i in range(8)]
    l += [f"v_fma_f32 v{T+i}, v{T+i}, s{sC1}, v{vC0}" for i in range(8)]
    l += [f"v_mul_f32 v{T+i}, v{T+i}, v{acc+i}" for i in range(8)]
    l += [f"v_exp_f32 v{T+i}, v{T+i}" for i in range(8)]
    l += [f"v_add_f32 v{T+i}, 1.0, v{T+i}" for i in range(8)]
    l += [f"v_rcp_f32 v{T+i}, v{T+i}" for i in range(8)]
    l += [f"v_mul_f32 v{T+i}, v{T+i}, v{acc+i}" for i in range(8)]
    l += [f"v_cvt_pk_bf16_f32 {vr(O+i//2)}, {vr(T+i)}, {vr(T+i+1)}" for i in range(0, 8, 2)]
    return l

def w2_lds(pos):
    if pos == 10: pos = 0
    if pos < 3:
        return DBASE + pos * 16384
    return (pos - 3) * 16384

def gen(prof=0, out_aux="", npoll=3, touch=True, spf=True, w2sched=(2, 1), lastp=True, PF=8, psleep=3, bxw=12):
    a = Asm()
    SB = 70
    def stamp(i):
        if prof == 1:
            a(f"s_memrealtime s[{SB+2*i}:{SB+2*i+1}]")
    def fstamp(i):
        if prof == 2:
            a(f"s_memrealtime s[{SB+2*i}:{SB+2*i+1}]")
    a("s_load_dwordx16 s[8:23], s[0:1], 0")
    stamp(0)
    a("s_cmp_ge_u32 s2, 256")
    a("s_cbranch_scc1 L_END")
    a("""v_lshrrev_b32 v2, 6, v0
    v_and_b32 v1, 63, v0
    s_and_b32 s3, s2, 7
    v_readfirstlane_b32 s7, v2
    s_bfe_u32 s4, s2, 0x30003
    s_lshr_b32 s5, s2, 6
    s_and_b32 s6, s3, 3
    s_lshl_b32 s30, s5, 2
    s_add_u32 s6, s6, s30
    s_lshr_b32 s24, s3, 2
    s_lshl_b32 s24, s24, 3
    s_add_u32 s24, s24, s4
    s_lshl_b32 s26, s5, 1
    s_add_u32 s26, s26, s4
    s_and_b32 s26, s26, 7
    s_and_b32 s28, s7, 3
    v_and_b32 v2, 3, v2
    s_cmp_ge_u32 s7, 4
    s_cbranch_scc1 L_LOADER""")
    vLane = 1; vQ = 2
    R = RegAlloc(3)
    t0 = R.alloc(); t1 = R.alloc(); t2 = R.alloc()
    vAW2 = R.alloc(6); vOH = R.alloc(); vRW = R.alloc(3); vRR = R.alloc(); vOO = R.alloc(); vN = R.alloc(); vNA = R.alloc(); vFA = R.alloc()
    vF = R.alloc(4)
    vb2 = R.alloc(4, 2)
    base = R.n
    R1 = RegAlloc(base)
    vAX = R1.alloc(8); vAW = R1.alloc(2); vOB = R1.alloc(); vC0 = R1.alloc(2, 2)
    acc = R1.alloc(48, 4)
    fx = [R1.alloc(4, 4) for _ in range(3)]
    fw = [R1.alloc(12, 4) for _ in range(3)]
    vb = fw[0]
    T = R1.alloc(8, 4); O = [R1.alloc(4, 4) for _ in range(6)]
    RL = RegAlloc(base)
    vOX = RL.alloc(4); vOW = RL.alloc(3); vOW2 = RL.alloc(4)
    R2 = RegAlloc(max(R1.n, RL.n))
    acc2 = R2.alloc(32, 4)
    fw2 = [R2.alloc(8, 4) for _ in range(2)]
    st0 = R2.alloc(16, 4)
    lastbuf = acc2
    R2b = RegAlloc(acc)
    fh = [R2b.alloc(4, 4) for _ in range(22)]
    assert R2b.n <= T
    nv = R2.n

    def common_setup():
        a("""s_lshl_b32 s25, s5, 3
        s_add_u32 s25, s25, s3
        s_mul_i32 s27, s5, 3
        s_lshl_b32 s30, s4, 2
        s_add_u32 s27, s27, s30
        s_mul_i32 s30, s27, 187
        s_lshr_b32 s30, s30, 11
        s_mul_i32 s30, s30, 11
        s_sub_u32 s27, s27, s30
        s_lshr_b32 s29, s7, 2""")
        a(f"""v_lshrrev_b32 v{t0}, 5, v{vLane}
        v_bfe_u32 v{t1}, v{vLane}, 2, 2
        v_lshl_add_u32 v{t0}, v{t0}, 2, v{t1}
        v_lshlrev_b32 v{t0}, 7, v{t0}
        v_bfe_u32 v{t1}, v{vLane}, 3, 1
        v_lshlrev_b32 v{t1}, 1, v{t1}
        v_bfe_u32 v{t2}, v{vLane}, 4, 1
        v_or_b32 v{t1}, v{t1}, v{t2}
        v_xor_b32 v{t1}, v{t1}, v{vQ}
        v_lshl_add_u32 v{t0}, v{t1}, 5, v{t0}
        v_and_b32 v{t1}, 3, v{vLane}
        v_lshl_add_u32 v{t0}, v{t1}, 3, v{t0}
        v_lshl_add_u32 v{vAW2}, v{vQ}, 12, v{t0}
        v_xor_b32 v{vAW2+1}, 64, v{vAW2}
        v_add_u32 v{vAW2+2}, 65536, v{vAW2}
        v_add_u32 v{vAW2+3}, 65536, v{vAW2+1}
        v_add_u32 v{vAW2+4}, 131072, v{vAW2}
        v_add_u32 v{vAW2+5}, 131072, v{vAW2+1}
        v_lshlrev_b32 v{vOH}, 4, v{vLane}""")
        a(f"s_mul_i32 s30, s29, 24576")
        a(f"v_add_u32 v{t0}, s30, v{vOH}")
        for o in range(1, 4):
            a(f"v_xor_b32 v{t1}, {o}, v{vQ}")
            a(f"v_mul_u32_u24 v{t1}, 6144, v{t1}")
            a(f"v_add_u32 v{vRW+o-1}, v{t1}, v{t0}")
        a(f"v_mul_u32_u24 v{t1}, 6144, v{vQ}")
        a(f"v_add_u32 v{vRR}, v{t1}, v{t0}")
        a(f"""v_and_b32 v{t0}, 31, v{vLane}
        v_lshlrev_b32 v{vNA}, 2, v{t0}
        v_lshrrev_b32 v{t1}, 5, v{vLane}
        v_lshlrev_b32 v{t1}, 4, v{t1}
        v_lshl_add_u32 v{vOO}, v{t0}, 10, v{t1}
        v_and_b32 v{vFA}, 15, v{vLane}
        v_lshlrev_b32 v{vFA}, 2, v{vFA}""")
        a("s_lshl_b32 s30, s25, 1")
        a("s_add_u32 s30, s30, s29")
        a(f"s_mul_i32 s68, s30, {MBS}")
        a("s_lshl_b32 s69, s4, 7")
        a("s_lshl_b32 s31, s28, 5")
        a("s_add_u32 s69, s69, s31")
        a("s_lshl_b32 s67, s30, 15")
        a("s_add_u32 s67, s67, s69")
    def common_srds():
        a(f"""s_mov_b32 s40, s22
        s_mov_b32 s41, s23
        s_mov_b32 s42, {H_BYTES}
        s_mov_b32 s43, 0x20000
        s_mov_b32 s44, s20
        s_mov_b32 s45, s21
        s_mov_b32 s46, 256
        s_mov_b32 s47, 0x20000
        s_add_u32 s52, s18, s67
        s_addc_u32 s53, s19, 0
        s_sub_u32 s54, 2097152, s67
        s_mov_b32 s55, 0x20000""")
    def b2_load():
        a("""s_mov_b32 s32, s16
        s_mov_b32 s33, s17
        s_mov_b32 s34, 1024
        s_mov_b32 s35, 0x20000""")
        a(f"v_lshrrev_b32 v{t1}, 5, v{vLane}")
        a(f"v_lshlrev_b32 v{t1}, 3, v{t1}")
        a(f"buffer_load_dwordx2 {vr(vb2,2)}, v{t1}, s[32:35], s69 offen")
        a(f"buffer_load_dwordx2 {vr(vb2+2,2)}, v{t1}, s[32:35], s69 offen offset:16")
    def stage0():
        k = w2_lds(0) >> 16; off = w2_lds(0) - (k << 16)
        for s in range(2):
            for p in range(2):
                for q in range(2):
                    a(f"ds_read_b64_tr_b16 {vr(st0+8*s+4*p+2*q,2)}, v{vAW2+2*k+p} offset:{off+s*2048+q*1024}")
    def ph2_scalars():
        a(f"s_add_u32 s63, s68, {MB_BYTES}")
        a("s_add_u32 s36, s22, s68")
        a("s_addc_u32 s37, s23, 0")
        a(f"s_mov_b32 s38, {MB_BYTES}")
        a("s_mov_b32 s39, 0x20000")
        a("s_mov_b32 s60, 0x00f8000f")
        a("s_mov_b32 s61, 0x78000780")
        a("s_lshl_b32 s31, s28, 4")
        a("s_lshr_b64 s[60:61], s[60:61], s31")
        a("s_and_b32 s60, s60, 0xffff")
    def ph2_init():
        a(f"s_mul_i32 s64, s28, {11*2048}")
        a(f"s_add_u32 s65, s64, {11*2048}")
        a("s_lshl_b32 s66, s27, 11")
        a("s_add_u32 s66, s66, s64")
        for i in range(8, 32):
            a(f"v_mov_b32 v{acc2+i}, 0")
        for i in range(4):
            a(f"v_lshlrev_b32 v{acc2+2*i}, 16, v{vb2+i}")
            a(f"v_and_b32 v{acc2+2*i+1}, 0xffff0000, v{vb2+i}")
    def poll_issue(k):
        a(f"buffer_load_dword v{vF+k}, v{vFA}, s[40:43], s63 offen sc1")

    a.c("compute waves")
    common_setup()
    a(f"""v_and_b32 v{t0}, 31, v{vLane}
    v_lshrrev_b32 v{t1}, 1, v{t0}
    v_and_b32 v{t1}, 7, v{t1}
    v_lshrrev_b32 v{t2}, 5, v{vLane}
    v_xor_b32 v{t1}, v{t1}, v{t2}
    v_lshlrev_b32 v{t0}, 7, v{t0}
    v_lshl_add_u32 v{t0}, v{vQ}, 12, v{t0}""")
    for t in range(4):
        a(f"v_xor_b32 v{vAX+t}, {2*t}, v{t1}")
        a(f"v_lshl_add_u32 v{vAX+t}, v{vAX+t}, 4, v{t0}")
        a(f"v_add_u32 v{vAX+4+t}, {2*SLOT}, v{vAX+t}")
    a(f"""v_lshlrev_b32 v{vOB}, 3, v{t2}
    v_bfe_u32 v{t0}, v{vLane}, 2, 2
    v_add_u32 v{t0}, v{t0}, v{vOB}
    v_mul_u32_u24 v{t0}, 192, v{t0}
    v_bfe_u32 v{t1}, v{vLane}, 4, 1
    v_lshl_add_u32 v{t0}, v{t1}, 5, v{t0}
    v_and_b32 v{t1}, 3, v{vLane}
    v_lshl_add_u32 v{t0}, v{t1}, 3, v{t0}
    v_add_u32 v{vAW}, 16384, v{t0}
    v_add_u32 v{vAW+1}, {2*SLOT+16384}, v{t0}
    v_mov_b32 v{vC0}, 0x{f32bits(C0):08x}
    v_mov_b32 v{vC0+1}, 0x{f32bits(C0):08x}
    s_mov_b32 s56, 0x{f32bits(C1):08x}
    s_mov_b32 s57, 0x{f32bits(C1):08x}""")
    a(f"v_bfe_u32 v{t0}, v{vLane}, 4, 1")
    a(f"v_mul_u32_u24 v{t0}, {MBS}, v{t0}")
    a(f"v_add_u32 v{t0}, v{t0}, v{vFA}")
    a("s_mul_i32 s58, s24, 192")
    a("s_lshl_b32 s59, s6, 2")
    a("s_add_u32 s59, s59, s7")
    a(f"s_mul_i32 s62, s59, {MBS}")
    a("s_mul_i32 s61, s24, 6144")
    a("s_add_u32 s64, s62, s61")
    a("s_add_u32 s65, s64, 4096")
    a(f"s_add_u32 s66, s62, {MB_BYTES+1024}")
    a("s_lshl_b32 s63, s24, 2")
    a("s_add_u32 s62, s62, s63")
    a(f"s_add_u32 s62, s62, {MB_BYTES}")
    a(f"s_mul_i32 s63, s25, {2*MBS}")
    a(f"s_add_u32 s63, s63, {MB_BYTES}")
    a("s_waitcnt lgkmcnt(0)")
    stamp(1)
    common_srds()
    a(f"""s_mov_b32 s32, s12
    s_mov_b32 s33, s13
    s_mov_b32 s34, 2752
    s_mov_b32 s35, 0x20000""")
    a("s_or_b32 s61, s4, s7")
    a("s_cmp_lg_u32 s61, 0")
    a("s_cbranch_scc1 L_NOLEAD")
    a(f"buffer_load_dword v{vF}, v{t0}, s[40:43], s63 offen sc1")
    a.label("L_NOLEAD")
    for p in range(3):
        for q in range(4):
            a(f"buffer_load_dwordx2 {vr(vb+(p*4+q)*2,2)}, v{vOB}, s[32:35], s58 offen offset:{64*p+16*q}")
    b2_load()
    if touch:
        a(f"v_mov_b32 v{t2}, 0")
        a("s_mov_b64 exec, 1")
        a(f"buffer_load_dword v{vF+1}, v{t2}, s[40:43], s66 offen")
        a(f"s_add_u32 s30, s68, {MB_BYTES+1024}")
        a(f"buffer_load_dword v{vF+2}, v{t2}, s[40:43], s30 offen")
        a(f"buffer_load_dword v{vF+3}, v{t2}, s[52:55], 0 offen")
        a("s_mov_b64 exec, -1")
    if spf:
        a("s_lshl_b32 s30, s2, 2")
        a("s_add_u32 s30, s30, s7")
        a("s_mul_i32 s30, s30, 1376")
        a("s_and_b32 s30, s30, 0xffffffc0")
        a("s_add_u32 s48, s14, s30")
        a("s_addc_u32 s49, s15, 0")
        for i in range(22 if spf is True else spf):
            a(f"s_load_dword s50, s[48:49], {min(i*64, 1372)}")
    a("s_cmp_lg_u32 s61, 0")
    a("s_cbranch_scc1 L_NOLEAD2")
    a(f"s_waitcnt vmcnt({14 + (3 if touch else 0)})")
    a(f"v_lshrrev_b32 v{t1}, v{vLane}, v{vF}")
    a(f"v_and_b32 v{t1}, 1, v{t1}")
    a(f"v_cmp_eq_u32 vcc, 0, v{t1}")
    a("s_lshl_b32 s30, s25, 2")
    a(f"v_mov_b32 v{t2}, s30")
    a("s_or_b32 s31, vcc_lo, 0x80000000")
    a(f"v_mov_b32 v{t1}, s31")
    a("s_mov_b64 exec, 1")
    a(f"buffer_store_dword v{t1}, v{t2}, s[44:47], 0 offen sc1")
    a("s_mov_b64 exec, -1")
    a.label("L_NOLEAD2")
    a(f"s_waitcnt vmcnt({2 + (3 if touch else 0)})")
    for i in range(24):
        a(f"v_lshlrev_b32 v{acc+2*i}, 16, v{vb+i}")
        a(f"v_and_b32 v{acc+2*i+1}, 0xffff0000, v{vb+i}")
    a("s_waitcnt lgkmcnt(0)")
    def rd(c, t, s):
        slot = c % 4
        hi = slot >> 1; off = (slot & 1) * SLOT
        l = [f"ds_read_b128 {vr(fx[s],4)}, v{vAX+4*hi+t} offset:{off}"]
        for p in range(3):
            for q in range(2):
                l.append(f"ds_read_b64_tr_b16 {vr(fw[s]+4*p+2*q,2)}, v{vAW+hi} offset:{off+t*3072+q*768+p*64}")
        return l
    def mf(s):
        return [f"v_mfma_f32_32x32x16_bf16 {vr(acc+16*p,16)}, {vr(fw[s]+4*p,4)}, {vr(fx[s],4)}, {vr(acc+16*p,16)}" for p in range(3)]
    def inter(m, r):
        for x in [m[0], r[0], r[1], r[2], m[1], r[3], r[4], m[2], r[5], r[6]]:
            a(x)
    def hstore(idx):
        so = "s64" if idx < 4 else "s65"
        return f"buffer_store_dwordx4 {vr(O[idx],4)}, v{vOH}, s[40:43], {so} offen offset:{(idx%4)*1024} sc1"
    for c in range(8):
        fstamp(2*c)
        a("s_barrier")
        fstamp(2*c+1)
        if c == 0: stamp(2)
        if c == 7:
            stamp(3)
            if lastp: break
        if c == 6:
            a("s_waitcnt vmcnt(0)")
            a(f"buffer_load_dword v{vN}, v{vNA}, s[44:47], 0 offen sc1")
        for x in rd(c, 0, (4*c) % 3): a(x)
        if c >= 1:
            inter(mf((4*c - 1) % 3), rd(c, 1, (4*c+1) % 3))
        else:
            for x in rd(c, 1, (4*c+1) % 3): a(x)
        a("s_waitcnt lgkmcnt(7)")
        inter(mf((4*c) % 3), rd(c, 2, (4*c+2) % 3))
        a("s_waitcnt lgkmcnt(7)")
        inter(mf((4*c+1) % 3), rd(c, 3, (4*c+3) % 3))
        a("s_waitcnt lgkmcnt(7)")
        for x in mf((4*c+2) % 3): a(x)
        a("s_waitcnt lgkmcnt(0)")
        if c == 6 and lastp:
            for x in mf(27 % 3): a(x)
    if not lastp:
        for x in mf(31 % 3): a(x)
        stamp(4)
        a("s_cmp_eq_u32 s24, 15")
        a("s_cbranch_scc1 L_NOFLAG")
        a("s_nop 7")
        pstart = 0
    else:
        LX = lambda t: lastbuf + 4*t
        LW = lambda p, t: lastbuf + 16 + 16*p + 4*t
        def rx(t): return f"ds_read_b128 {vr(LX(t),4)}, v{vAX+4+t} offset:{SLOT}"
        def rw(p, t): return [f"ds_read_b64_tr_b16 {vr(LW(p,t)+2*q,2)}, v{vAW+1} offset:{SLOT+t*3072+q*768+p*64}" for q in range(2)]
        def m(p, t): return f"v_mfma_f32_32x32x16_bf16 {vr(acc+16*p,16)}, {vr(LW(p,t),4)}, {vr(LX(t),4)}, {vr(acc+16*p,16)}"
        for t in range(4):
            a(rx(t))
            for x in rw(0, t): a(x)
        a("s_waitcnt lgkmcnt(9)"); a(m(0, 0))
        for x in rw(1, 0) + rw(1, 1): a(x)
        a("s_waitcnt lgkmcnt(10)"); a(m(0, 1))
        for x in rw(1, 2) + rw(1, 3): a(x)
        a("s_waitcnt lgkmcnt(11)"); a(m(0, 2))
        for x in rw(2, 0) + rw(2, 1): a(x)
        a("s_waitcnt lgkmcnt(12)"); a(m(0, 3))
        for x in rw(2, 2): a(x)
        a("s_waitcnt lgkmcnt(12)"); a(m(1, 0))
        for x in rw(2, 3): a(x)
        a("s_waitcnt lgkmcnt(8)"); a(m(1, 1))
        stamp(4)
        a("s_cmp_eq_u32 s24, 15")
        a("s_cbranch_scc1 L_NOFLAG0")
        a("s_nop 1")
        rest = [m(1, 2), m(1, 3), "W0", m(2, 0), m(2, 1), m(2, 2), m(2, 3)]
        g = gelu8_sc(acc, T, O[0], 56, vC0)
        cost = 0; nxt = 24
        for ins in g:
            a(ins)
            cost += 8 if ("exp" in ins or "rcp" in ins) else 4
            if cost >= nxt and rest:
                x = rest.pop(0)
                if x == "W0":
                    a("s_waitcnt lgkmcnt(0)"); x = rest.pop(0)
                a(x); cost += 0; nxt = cost + 24
        assert not rest
        a(hstore(0))
        for ins in gelu8_pk(acc + 8, T, O[1], 56, vC0): a(ins)
        a(hstore(1))
        pstart = 1
    for p in range(pstart, 3):
        if p == 1:
            a("s_cmp_eq_u32 s24, 14")
            a("s_cbranch_scc1 L_STORED")
        for e in range(2):
            for ins in gelu8_pk(acc + 16*p + 8*e, T, O[2*p+e], 56, vC0): a(ins)
            a(hstore(2*p+e))
    a.label("L_STORED")
    stamp(5)
    a("s_lshr_b32 s30, s59, 1")
    a("s_mov_b32 s67, 0")
    a(f"v_mov_b32 v{t2}, s62")
    ph2_scalars()
    poll_issue(0)
    a("s_barrier")
    stage0()
    a("s_waitcnt lgkmcnt(0)")
    a("s_barrier")
    ph2_init()
    a("s_waitcnt vmcnt(1)")
    a.label("L_PN")
    a(f"v_readlane_b32 s31, v{vN}, s30")
    a("s_add_u32 s67, s67, 1")
    a("s_nop 1")
    a("s_cmp_lg_u32 s31, 0")
    a("s_cbranch_scc1 L_PN_OK")
    a("s_cmp_gt_u32 s67, 0x100000")
    a("s_cbranch_scc1 L_PN_OK")
    a(f"buffer_load_dword v{vN}, v{vNA}, s[44:47], 0 offen sc1")
    a("s_waitcnt vmcnt(0)")
    a("s_branch L_PN")
    a.label("L_PN_OK")
    stamp(6)
    a(f"v_mov_b32 v{t1}, s31")
    a("s_mov_b64 exec, 1")
    a(f"buffer_store_dword v{t1}, v{t2}, s[40:43], 0 offen sc1")
    a("s_mov_b64 exec, -1")
    a("s_waitcnt vmcnt(1)")
    a("s_branch L_PHASE2")
    a.label("L_NOFLAG0")
    a("s_waitcnt lgkmcnt(0)")
    a.label("L_NOFLAG")
    ph2_scalars()
    poll_issue(0)
    a("s_barrier")
    stage0()
    a("s_waitcnt lgkmcnt(0)")
    a("s_barrier")
    ph2_init()
    a("s_waitcnt vmcnt(0)")
    a("s_branch L_PHASE2")

    a.label("L_LOADER")
    a(f"""v_lshrrev_b32 v{t0}, 3, v{vLane}
    v_lshl_add_u32 v{t0}, v{vQ}, 5, v{t0}
    v_lshlrev_b32 v{t0}, 10, v{t0}
    v_lshrrev_b32 v{t1}, 4, v{vLane}
    v_and_b32 v{t2}, 7, v{vLane}
    v_xor_b32 v{t1}, v{t1}, v{t2}
    v_lshl_add_u32 v{vOX}, v{t1}, 4, v{t0}
    v_xor_b32 v{t1}, 4, v{t1}
    v_lshl_add_u32 v{vOX+1}, v{t1}, 4, v{t0}
    v_add_u32 v{vOX+1}, {8192-1024}, v{vOX+1}
    v_add_u32 v{vOX+2}, {2*(8192-1024)}, v{vOX}
    v_add_u32 v{vOX+3}, {2*(8192-1024)}, v{vOX+1}
    v_mul_u32_u24 v{t0}, 192, v{vQ}
    v_add_u32 v{t0}, v{t0}, v{vLane}""")
    for j in range(3):
        if j:
            a(f"v_add_u32 v{t0}, 64, v{t0}")
        a(f"v_mul_u32_u24 v{t1}, 43691, v{t0}")
        a(f"v_lshrrev_b32 v{t1}, 19, v{t1}")
        a(f"v_mul_u32_u24 v{t2}, 12, v{t1}")
        a(f"v_sub_u32 v{t2}, v{t0}, v{t2}")
        a(f"v_mul_u32_u24 v{t1}, 2752, v{t1}")
        a(f"v_lshl_add_u32 v{vOW+j}, v{t2}, 4, v{t1}")
        if j:
            a(f"v_subrev_u32 v{vOW+j}, {1024*j}, v{vOW+j}")
    a("s_lshl_b32 s56, s28, 12")
    a("s_mul_i32 s57, s28, 3072")
    a("s_add_u32 s57, s57, 16384")
    a("s_mul_i32 s58, s24, 192")
    a("s_lshl_b32 s59, s6, 17")
    a("s_sub_u32 s38, 1409024, s58")
    a("s_cmp_eq_u32 s24, 15")
    a("s_cselect_b32 s38, 0, s38")
    a("s_cselect_b32 s34, 0, 131072")
    a("s_mov_b32 s35, 0x20000")
    a("s_mov_b32 s39, 0x20000")
    a("s_mov_b32 s62, s26")
    a("s_waitcnt lgkmcnt(0)")
    stamp(1)
    a("""s_add_u32 s32, s8, s59
    s_addc_u32 s33, s9, 0
    s_add_u32 s36, s10, s58
    s_addc_u32 s37, s11, 0""")
    def dma1(c):
        slot = c % 4
        a(f"s_add_u32 m0, s56, {slot*SLOT}")
        a("s_lshl_b32 s63, s62, 7")
        for j in range(4):
            a(f"buffer_load_dwordx4 v{vOX+j}, s[32:35], s63 offen offset:{1024*j} lds")
        a(f"s_add_u32 m0, s57, {slot*SLOT}")
        a("s_mul_i32 s63, s62, 176128")
        for j in range(3):
            a(f"buffer_load_dwordx4 v{vOW+j}, s[36:39], s63 offen offset:{1024*j} lds")
        a("s_add_u32 s62, s62, 1")
        a("s_and_b32 s62, s62, 7")
    dma1(0); dma1(1)
    common_setup()
    common_srds()
    a(f"""v_lshrrev_b32 v{t0}, 3, v{vLane}
    v_bfe_u32 v{t1}, v{vLane}, 4, 1
    v_lshlrev_b32 v{t1}, 2, v{t1}
    v_and_b32 v{t2}, 7, v{vLane}
    v_xor_b32 v{t1}, v{t1}, v{t2}
    v_lshlrev_b32 v{t0}, 10, v{t0}
    v_lshl_add_u32 v{vOW2}, v{t1}, 4, v{t0}""")
    for j in range(1, 4):
        a(f"v_add_u32 v{vOW2+j}, {j*(8192-1024)}, v{vOW2}")
    a("s_lshl_b32 s30, s4, 7")
    a("""s_add_u32 s48, s14, s30
    s_addc_u32 s49, s15, 0
    s_sub_u32 s50, 1409024, s30
    s_mov_b32 s51, 0x20000""")
    a(f"s_mul_i32 s64, s28, {11*32768}")
    a(f"s_add_u32 s65, s64, {11*32768}")
    a("s_lshl_b32 s66, s27, 15")
    a("s_add_u32 s66, s66, s64")
    dma1(2)
    def dma2(pos):
        a(f"s_add_u32 m0, s56, {w2_lds(pos)}")
        a("s_nop 0")
        for j in range(4):
            a(f"buffer_load_dwordx4 v{vOW2+j}, s[48:51], s66 offen offset:{1024*j} lds")
        a("s_add_u32 s66, s66, 32768")
        a("s_cmp_eq_u32 s66, s65")
        a("s_cselect_b32 s66, s64, s66")
    n5, n6 = w2sched
    allowed = [14, 14, 14, 14, 14, 14, 7 + 4*n5, 4*(n5+n6)]
    pos = 0
    for i in range(8):
        fstamp(2*i)
        a(f"s_waitcnt vmcnt({allowed[i]})")
        fstamp(2*i+1)
        a("s_barrier")
        if i == 0: stamp(2)
        if i == 7: stamp(3)
        if i + 3 <= 7:
            dma1(i + 3)
        else:
            n = {5: n5, 6: n6, 7: 8 - n5 - n6}[i]
            if i == 7: b2_load()
            for _ in range(n):
                dma2(pos); pos += 1
    stamp(4)
    ph2_scalars()
    a(f"s_waitcnt vmcnt({bxw})")
    stamp(5)
    a("s_barrier")
    stamp(6)
    stage0()
    a("s_waitcnt lgkmcnt(0)")
    a("s_barrier")
    a(f"buffer_load_dword v{vN}, v{vNA}, s[44:47], 0 offen sc1")
    poll_issue(0)
    dma2(8); dma2(9); dma2(10)
    ph2_init()
    a("s_waitcnt vmcnt(12)")

    a.label("L_PHASE2")
    a("s_barrier")
    stamp(7)
    a("s_mov_b32 s67, 0")
    a(f"v_readlane_b32 s62, v{vN}, s25")
    a("s_nop 3")
    a("s_cmp_lg_u32 s62, 0")
    a("s_cbranch_scc1 L_CN_OK")
    a.label("L_CN")
    a(f"buffer_load_dword v{vN}, v{vNA}, s[44:47], 0 offen sc1")
    a("s_waitcnt vmcnt(0)")
    a(f"v_readlane_b32 s62, v{vN}, s25")
    a("s_add_u32 s67, s67, 1")
    a("s_nop 1")
    a("s_cmp_lg_u32 s62, 0")
    a("s_cbranch_scc1 L_CN_OK")
    a("s_cmp_le_u32 s67, 0x100000")
    a("s_cbranch_scc1 L_CN")
    a.label("L_CN_OK")
    a(f"v_cmp_eq_u32 vcc, s62, v{vF}")
    a("s_nop 1")
    a("s_and_b32 s31, vcc_lo, s60")
    a("s_cmp_eq_u32 s31, s60")
    a("s_cbranch_scc1 L_GO")
    for k in range(npoll):
        if k: a(f"s_sleep {psleep}")
        poll_issue(k)
    a.label("L_POLL")
    for k in range(npoll):
        a(f"s_waitcnt vmcnt({npoll-1})")
        a(f"v_cmp_eq_u32 vcc, s62, v{vF+k}")
        a("s_add_u32 s67, s67, 1")
        a("s_nop 0")
        a("s_and_b32 s31, vcc_lo, s60")
        a("s_cmp_eq_u32 s31, s60")
        a("s_cbranch_scc1 L_GO")
        poll_issue(k)
    a("s_cmp_le_u32 s67, 0x100000")
    a("s_cbranch_scc1 L_POLL")
    a.label("L_GO")
    stamp(8)
    def hload(s):
        a(f"buffer_load_dwordx4 {vr(fh[s],4)}, v{vOH}, s[36:39], s66 offen offset:{(s&1)*1024} sc1")
        if s & 1:
            a("s_add_u32 s66, s66, 2048")
            a("s_cmp_eq_u32 s66, s65")
            a("s_cselect_b32 s66, s64, s66")
    for s in range(PF):
        hload(s)
    def wreads(s):
        pos = s >> 1
        off = w2_lds(pos) + (s & 1) * 2048
        k = off >> 16
        off -= k << 16
        return [f"ds_read_b64_tr_b16 {vr(fw2[s&1]+4*p+2*q,2)}, v{vAW2+2*k+p} offset:{off+q*1024}" for p in range(2) for q in range(2)]
    last = PF - 1
    for s in range(22):
        if s + 1 == 16:
            a("s_waitcnt lgkmcnt(0)")
            a("s_barrier")
        if 2 <= s + 1 < 22:
            for x in wreads(s + 1): a(x)
        a(f"s_waitcnt vmcnt({last - s})" + (f" lgkmcnt({4 if s + 1 < 22 else 0})" if s >= 2 else ""))
        if s == 0: stamp(9)
        if s == 21: stamp(10)
        wf = st0 + 8 * s if s < 2 else fw2[s & 1]
        for p in range(2):
            a(f"v_mfma_f32_32x32x16_bf16 {vr(acc2+16*p,16)}, {vr(wf+4*p,4)}, {vr(fh[s],4)}, {vr(acc2+16*p,16)}")
        if s + PF < 22:
            hload(s + PF); last = s + PF
    stamp(11)
    a("s_nop 10")
    for o in range(1, 4):
        if o == 2: a("s_nop 1")
        for e in range(2):
            a(f"ds_write_b128 v{vRW+o-1}, {vr(acc2+8*o+4*e,4)} offset:{(o-1)*2048+e*1024}")
    a("s_waitcnt lgkmcnt(0)")
    a("s_barrier")
    stamp(12)
    rdm = fh[0]
    for o in range(3):
        for e in range(2):
            a(f"ds_read_b128 {vr(rdm+8*o+4*e,4)}, v{vRR} offset:{o*2048+e*1024}")
    for o in range(3):
        a(f"s_waitcnt lgkmcnt({4-2*o})")
        for i in range(0, 8, 2):
            a(f"v_pk_add_f32 {vr(acc2+i,2)}, {vr(acc2+i,2)}, {vr(rdm+8*o+i,2)}")
    od = fw2[0]
    for i in range(4):
        a(f"v_cvt_pk_bf16_f32 v{od+i}, v{acc2+2*i}, v{acc2+2*i+1}")
    a("s_nop 1")
    a(f"v_permlane32_swap_b32 v{od}, v{od+2}")
    a(f"v_permlane32_swap_b32 v{od+1}, v{od+3}")
    a(f"buffer_store_dwordx4 {vr(od,4)}, v{vOO}, s[52:55], 0 offen {out_aux}")
    if prof:
        stamp(13)
        a("s_waitcnt vmcnt(0)")
        stamp(14)
        a("s_waitcnt lgkmcnt(0)")
        if prof == 1:
            a(f"s_mov_b32 s{SB+30}, s67")
            a(f"s_mov_b32 s{SB+31}, 0")
        a(f"s_add_u32 s44, s22, {128<<20}")
        a(f"s_addc_u32 s45, s23, 0")
        a("s_mov_b32 s46, 0x1000000")
        a("s_mov_b32 s47, 0x20000")
        a("s_lshl_b32 s48, s2, 3")
        a("s_add_u32 s48, s48, s7")
        a(f"s_mul_i32 s48, s48, {NST*8}")
        a("v_mov_b32 v1, 0")
        for i in range(NST):
            a(f"v_mov_b32 v2, s{SB+2*i}")
            a(f"v_mov_b32 v3, s{SB+2*i+1}")
            a(f"buffer_store_dwordx2 v[2:3], v1, s[44:47], s48 offen offset:{8*i}")
            a("s_nop 1")
    a.label("L_END")
    a("s_endpgm")
    return a.text(), nv

def build(out, **kw):
    k, nv = gen(**kw)
    s = HEADER + "; @launch grid=(256,1,1) block=(512,1,1) lds=163840\n"
    s += '.amdgcn_target "amdgcn-amd-amdhsa--gfx950"\n.text\n'
    s += kernel_start(NAME) + k
    s += '.section .rodata,"a"\n' + kernel_desc(NAME, nv, 102)
    open(out, "w").write(s)
    print(out, "vgprs", nv)

if __name__ == "__main__":
    build("v3.s"); build("v3p.s", prof=1); build("v3f.s", prof=2)
    build("v3p_notouch.s", prof=1, touch=False); build("v3p_nospf.s", prof=1, spf=False); build("v3p_p1.s", prof=1, npoll=1); build("v3p_nolast.s", prof=1, lastp=False)
```

```python
import sys, math
from asmlib import *
from gen_v3 import gelu8_pk, gelu8_sc

MB_BYTES = 86 * 1024
MBS = 88 * 1024
H_BYTES = 64 * MBS
C0 = -2.0 * math.sqrt(2.0 / math.pi) * math.log2(math.e)
C1 = C0 * 0.044715
NAME = "standalone__dense_activation_gelu__prompt_kernel"
SLOT = 28672
DBASE = 4 * SLOT
NST = 16
LIM = 0x100000

def w2_lds(pos):
    if pos == 10: pos = 0
    if pos < 3:
        return DBASE + pos * 16384
    return (pos - 3) * 16384

def grp(pos, kq):
    i = 4 * pos + kq
    p = (i >= 15) + (i >= 29)
    ft = i - (0, 15, 29)[p]
    return ft, p, 3 * ft + p
STG = [0]*3 + [1]*4 + [2]*4
def mask(kq, st):
    m = 0
    for pos in range(11):
        ft, p, g = grp(pos, kq)
        if STG[pos] == st and g < 43: m |= 1 << ft
    return m

class Cnt:
    def __init__(self): self.q = []
    def issue(self, tag, n=1): self.q += [tag] * n
    def need(self, tag):
        idx = max(i for i, t in enumerate(self.q) if t == tag)
        return len(self.q) - 1 - idx

def gen(prof=0, PF=8, psleep=2, lsp=(1,2,3,4), staged=True, l5=2, l6=2, f1at=4, cpf=False, p2at=9):
    a = Asm(); stubs = Asm()
    SB = 70
    def stamp(i):
        if prof == 1:
            a(f"s_memrealtime s[{SB+2*i}:{SB+2*i+1}]")
    a("s_load_dwordx16 s[8:23], s[0:1], 0")
    stamp(0)
    a("s_cmp_ge_u32 s2, 256")
    a("s_cbranch_scc1 L_END")
    a("""v_lshrrev_b32 v2, 6, v0
    v_and_b32 v1, 63, v0
    s_and_b32 s3, s2, 7
    v_readfirstlane_b32 s7, v2
    s_bfe_u32 s4, s2, 0x30003
    s_lshr_b32 s5, s2, 6
    s_and_b32 s6, s3, 3
    s_lshl_b32 s30, s5, 2
    s_add_u32 s6, s6, s30
    s_lshr_b32 s24, s3, 2
    s_lshl_b32 s24, s24, 3
    s_add_u32 s24, s24, s4
    s_and_b32 s28, s7, 3
    v_and_b32 v2, 3, v2
    s_cmp_lt_u32 s7, 4
    s_cbranch_scc1 L_C""")
    vLane = 1; vQ = 2
    R = RegAlloc(3)
    t0 = R.alloc(); t1 = R.alloc(); t2 = R.alloc()
    vAW2 = R.alloc(6); vOH = R.alloc(); vRW = R.alloc(3); vRR = R.alloc(); vOO = R.alloc(); vN = R.alloc(); vNA = R.alloc(); vFA = R.alloc()
    vF = R.alloc(2); vD = R.alloc()
    vb2 = R.alloc(4, 2)
    base = R.n
    R1 = RegAlloc(base)
    vAX = R1.alloc(8); vAW = R1.alloc(2); vFS = R1.alloc(); vFV = R1.alloc(3); vC0 = R1.alloc(2, 2)
    acc = R1.alloc(48, 4)
    fx = [R1.alloc(4, 4) for _ in range(3)]
    fw = [R1.alloc(12, 4) for _ in range(3)]
    T = R1.alloc(8, 4); O = [R1.alloc(4, 4) for _ in range(6)]
    RL = RegAlloc(base)
    vOX = RL.alloc(4); vOW = RL.alloc(3); vOW2 = RL.alloc(4)
    assert RL.n <= acc
    R2 = RegAlloc(R1.n)
    acc2 = R2.alloc(32, 4)
    fw2 = [R2.alloc(8, 4) for _ in range(2)]
    st0 = R2.alloc(16, 4)
    lastbuf = acc2
    R2b = RegAlloc(acc)
    fh = [R2b.alloc(4, 4) for _ in range(22)]
    assert R2b.n <= T
    nv = R2.n

    def common_setup():
        a("""s_add_u32 s30, s3, 1
        s_and_b32 s30, s30, 3
        s_lshl_b32 s30, s30, 1
        s_lshl_b32 s25, s5, 3
        s_add_u32 s25, s25, s30
        s_lshr_b32 s30, s3, 2
        s_add_u32 s25, s25, s30
        s_lshr_b32 s29, s7, 2
        s_lshl_b32 s26, s28, 12
        s_mul_i32 s27, s28, 3""")
        a(f"""v_lshrrev_b32 v{t0}, 5, v{vLane}
        v_bfe_u32 v{t1}, v{vLane}, 2, 2
        v_lshl_add_u32 v{t0}, v{t0}, 2, v{t1}
        v_lshlrev_b32 v{t0}, 7, v{t0}
        v_bfe_u32 v{t1}, v{vLane}, 3, 1
        v_lshlrev_b32 v{t1}, 1, v{t1}
        v_bfe_u32 v{t2}, v{vLane}, 4, 1
        v_or_b32 v{t1}, v{t1}, v{t2}
        v_xor_b32 v{t1}, v{t1}, v{vQ}
        v_lshl_add_u32 v{t0}, v{t1}, 5, v{t0}
        v_and_b32 v{t1}, 3, v{vLane}
        v_lshl_add_u32 v{t0}, v{t1}, 3, v{t0}
        v_lshl_add_u32 v{vAW2}, v{vQ}, 12, v{t0}
        v_xor_b32 v{vAW2+1}, 64, v{vAW2}
        v_add_u32 v{vAW2+2}, 65536, v{vAW2}
        v_add_u32 v{vAW2+3}, 65536, v{vAW2+1}
        v_add_u32 v{vAW2+4}, 131072, v{vAW2}
        v_add_u32 v{vAW2+5}, 131072, v{vAW2+1}
        v_lshlrev_b32 v{vOH}, 4, v{vLane}
        s_mul_i32 s30, s29, 24576
        v_add_u32 v{t0}, s30, v{vOH}""")
        for o in range(1, 4):
            a(f"v_xor_b32 v{t1}, {o}, v{vQ}")
            a(f"v_mul_u32_u24 v{t1}, 6144, v{t1}")
            a(f"v_add_u32 v{vRW+o-1}, v{t1}, v{t0}")
        a(f"v_mul_u32_u24 v{t1}, 6144, v{vQ}")
        a(f"v_add_u32 v{vRR}, v{t1}, v{t0}")
        a(f"""v_and_b32 v{t0}, 31, v{vLane}
        v_lshlrev_b32 v{vNA}, 2, v{t0}
        v_lshrrev_b32 v{t1}, 5, v{vLane}
        v_lshlrev_b32 v{t1}, 4, v{t1}
        v_lshl_add_u32 v{vOO}, v{t0}, 10, v{t1}
        v_and_b32 v{vFA}, 15, v{vLane}
        v_lshlrev_b32 v{vFA}, 2, v{vFA}
        s_lshl_b32 s30, s25, 1
        s_add_u32 s30, s30, s29
        s_mul_i32 s68, s30, {MBS}
        s_lshl_b32 s69, s4, 7
        s_lshl_b32 s31, s28, 5
        s_add_u32 s69, s69, s31
        s_lshl_b32 s67, s30, 15
        s_add_u32 s67, s67, s69""")
        g3 = [grp(3, k)[2] for k in range(4)]; g7 = [grp(7, k)[2] for k in range(4)]
        a(f"s_add_u32 s64, s27, {g3[0]}")
        a("s_cmp_eq_u32 s28, 3")
        a(f"s_cselect_b32 s64, {g3[3]}, s64")
        a(f"s_add_u32 s65, s27, {g7[1]-3}")
        a("s_cmp_eq_u32 s28, 0")
        a(f"s_cselect_b32 s65, {g7[0]}, s65")
    def goff(pos, shift, dst):
        if pos == 3: a(f"s_lshl_b32 {dst}, s64, {shift}")
        elif pos == 7: a(f"s_lshl_b32 {dst}, s65, {shift}")
        else:
            g0 = grp(pos, 0)[2]
            assert all(grp(pos, k)[2] == g0 + 3 * k for k in range(4))
            a(f"s_add_u32 {dst}, s27, {g0}")
            a(f"s_lshl_b32 {dst}, {dst}, {shift}")
    def common_srds():
        a(f"""s_mov_b32 s40, s22
        s_mov_b32 s41, s23
        s_mov_b32 s42, {H_BYTES}
        s_mov_b32 s43, 0x20000
        s_mov_b32 s44, s20
        s_mov_b32 s45, s21
        s_mov_b32 s46, 256
        s_mov_b32 s47, 0x20000
        s_add_u32 s52, s18, s67
        s_addc_u32 s53, s19, 0
        s_sub_u32 s54, 2097152, s67
        s_mov_b32 s55, 0x20000""")
    def b2_load():
        a("""s_mov_b32 s32, s16
        s_mov_b32 s33, s17
        s_mov_b32 s34, 1024
        s_mov_b32 s35, 0x20000""")
        a(f"v_lshrrev_b32 v{t1}, 5, v{vLane}")
        a(f"v_lshlrev_b32 v{t1}, 3, v{t1}")
        a(f"buffer_load_dwordx2 {vr(vb2,2)}, v{t1}, s[32:35], s69 offen")
        a(f"buffer_load_dwordx2 {vr(vb2+2,2)}, v{t1}, s[32:35], s69 offen offset:16")
    def stage0():
        k = w2_lds(0) >> 16; off = w2_lds(0) - (k << 16)
        for s in range(2):
            for p in range(2):
                for q in range(2):
                    a(f"ds_read_b64_tr_b16 {vr(st0+8*s+4*p+2*q,2)}, v{vAW2+2*k+p} offset:{off+s*2048+q*1024}")
    def ph2_scalars():
        a(f"s_add_u32 s63, s68, {MB_BYTES}")
        a("s_add_u32 s36, s22, s68")
        a("s_addc_u32 s37, s23, 0")
        a(f"s_mov_b32 s38, {MB_BYTES}")
        a("s_mov_b32 s39, 0x20000")
        a("s_lshl_b32 s31, s28, 4")
        for st in range(3):
            m = [mask(k, st) if staged else (mask(k,0) | mask(k,1) | mask(k,2)) for k in range(4)]
            a(f"s_mov_b32 s60, 0x{(m[1] << 16) | m[0]:08x}")
            a(f"s_mov_b32 s61, 0x{(m[3] << 16) | m[2]:08x}")
            a("s_lshr_b64 s[60:61], s[60:61], s31")
            a(f"s_and_b32 s{56+st}, s60, 0xffff")
    def acc2_zero():
        for i in range(8, 32):
            a(f"v_mov_b32 v{acc2+i}, 0")
    def acc2_bias():
        for i in range(4):
            a(f"v_lshlrev_b32 v{acc2+2*i}, 16, v{vb2+i}")
            a(f"v_and_b32 v{acc2+2*i+1}, 0xffff0000, v{vb2+i}")
    def poll_issue(k, o=a):
        o(f"buffer_load_dword v{vF+k}, v{vFA}, s[40:43], s63 offen sc1")
    def chk(k, st, o=a):
        lvl = st + 1 if staged else 3
        o(f"v_subrev_u32 v{vD}, s62, v{vF+k}")
        o(f"v_subrev_u32 v{vD}, {lvl}, v{vD}")
        o(f"v_cmp_ge_u32 vcc, {3-lvl}, v{vD}")
        o("s_nop 1")
        o(f"s_and_b32 s31, vcc_lo, s{56+st}")
        o(f"s_cmp_eq_u32 s31, s{56+st}")

    a.c("loader waves")
    a("""s_add_u32 s62, s5, s4
    s_and_b32 s62, s62, 1
    s_lshl_b32 s62, s62, 2
    s_lshr_b32 s30, s3, 2
    s_add_u32 s30, s30, s3
    s_and_b32 s30, s30, 1
    s_lshl_b32 s30, s30, 1
    s_add_u32 s62, s62, s30""")
    a(f"""v_lshrrev_b32 v{t0}, 3, v{vLane}
    v_lshl_add_u32 v{t0}, v{vQ}, 5, v{t0}
    v_lshlrev_b32 v{t0}, 10, v{t0}
    v_lshrrev_b32 v{t1}, 4, v{vLane}
    v_and_b32 v{t2}, 7, v{vLane}
    v_xor_b32 v{t1}, v{t1}, v{t2}
    v_lshl_add_u32 v{vOX}, v{t1}, 4, v{t0}
    v_xor_b32 v{t1}, 4, v{t1}
    v_lshl_add_u32 v{vOX+1}, v{t1}, 4, v{t0}
    v_add_u32 v{vOX+1}, {8192-1024}, v{vOX+1}
    v_add_u32 v{vOX+2}, {2*(8192-1024)}, v{vOX}
    v_add_u32 v{vOX+3}, {2*(8192-1024)}, v{vOX+1}
    v_mul_u32_u24 v{t0}, 192, v{vQ}
    v_add_u32 v{t0}, v{t0}, v{vLane}""")
    for j in range(3):
        if j:
            a(f"v_add_u32 v{t0}, 64, v{t0}")
        a(f"v_mul_u32_u24 v{t1}, 43691, v{t0}")
        a(f"v_lshrrev_b32 v{t1}, 19, v{t1}")
        a(f"v_mul_u32_u24 v{t2}, 12, v{t1}")
        a(f"v_sub_u32 v{t2}, v{t0}, v{t2}")
        a(f"v_mul_u32_u24 v{t1}, 2752, v{t1}")
        a(f"v_lshl_add_u32 v{vOW+j}, v{t2}, 4, v{t1}")
        if j:
            a(f"v_subrev_u32 v{vOW+j}, {1024*j}, v{vOW+j}")
    a("""s_lshl_b32 s56, s28, 12
    s_mul_i32 s57, s28, 3072
    s_add_u32 s57, s57, 16384
    s_mul_i32 s58, s24, 192
    s_lshl_b32 s59, s6, 17
    s_sub_u32 s38, 1409024, s58
    s_cmp_eq_u32 s24, 15
    s_cselect_b32 s38, 0, s38
    s_cselect_b32 s34, 0, 131072
    s_mov_b32 s35, 0x20000
    s_mov_b32 s39, 0x20000
    s_waitcnt lgkmcnt(0)""")
    stamp(1)
    a("""s_add_u32 s32, s8, s59
    s_addc_u32 s33, s9, 0
    s_add_u32 s36, s10, s58
    s_addc_u32 s37, s11, 0""")
    def dma1(c):
        slot = c % 4
        a(f"s_add_u32 m0, s56, {slot*SLOT}")
        a("s_lshl_b32 s63, s62, 7")
        for j in range(4):
            a(f"buffer_load_dwordx4 v{vOX+j}, s[32:35], s63 offen offset:{1024*j} lds")
        a(f"s_add_u32 m0, s57, {slot*SLOT}")
        a("s_mul_i32 s63, s62, 176128")
        for j in range(3):
            a(f"buffer_load_dwordx4 v{vOW+j}, s[36:39], s63 offen offset:{1024*j} lds")
        a("s_add_u32 s62, s62, 1")
        a("s_and_b32 s62, s62, 7")
    def dma2(pos):
        a(f"s_add_u32 m0, s26, {w2_lds(pos)}")
        goff(pos, 15, "s66")
        for j in range(4):
            a(f"buffer_load_dwordx4 v{vOW2+j}, s[48:51], s66 offen offset:{1024*j} lds")
    dma1(0); dma1(1)
    common_setup()
    common_srds()
    a(f"""v_lshrrev_b32 v{t0}, 3, v{vLane}
    v_bfe_u32 v{t1}, v{vLane}, 4, 1
    v_lshlrev_b32 v{t1}, 2, v{t1}
    v_and_b32 v{t2}, 7, v{vLane}
    v_xor_b32 v{t1}, v{t1}, v{t2}
    v_lshlrev_b32 v{t0}, 10, v{t0}
    v_lshl_add_u32 v{vOW2}, v{t1}, 4, v{t0}""")
    for j in range(1, 4):
        a(f"v_add_u32 v{vOW2+j}, {j*(8192-1024)}, v{vOW2}")
    a("""s_lshl_b32 s30, s4, 7
    s_add_u32 s48, s14, s30
    s_addc_u32 s49, s15, 0
    s_sub_u32 s50, 1409024, s30
    s_mov_b32 s51, 0x20000""")
    if lsp:
        a("""s_lshl_b32 s30, s2, 2
        s_add_u32 s30, s30, s28
        s_mul_i32 s30, s30, 1376
        s_and_b32 s30, s30, 0xffffffc0
        s_add_u32 s58, s14, s30
        s_addc_u32 s59, s15, 0
        s_lshr_b32 s30, s2, 3
        s_mul_i32 s30, s30, 43
        s_mul_i32 s31, s28, 11
        s_add_u32 s30, s30, s31
        s_min_u32 s30, s30, 1365
        s_lshl_b32 s30, s30, 10
        s_add_u32 s60, s14, s30
        s_addc_u32 s61, s15, 0""")
        lds_ = []
        for i in range(22):
            lds_.append(f"s_load_dword s31, s[60:61], {(i//2)*1024+384+(i&1)*64}")
            lds_.append(f"s_load_dword s31, s[58:59], {min(i*64, 1372)}")
        per = (len(lds_) + len(lsp) - 1) // len(lsp)
    dma1(2)
    allowed = [14, 14, 14, 14, 14, 14, 7 + 4*l5, 4*(l5+l6)]
    pos = 0
    for i in range(8):
        a(f"s_waitcnt vmcnt({allowed[i]})")
        a("s_barrier")
        if i == 0: stamp(2)
        if i == 7: stamp(3)
        if lsp and i in lsp:
            for x in lds_[lsp.index(i)*per:(lsp.index(i)+1)*per]: a(x)
        if i + 3 <= 7:
            dma1(i + 3)
        else:
            if i == 7: b2_load()
            for _ in range({5: l5, 6: l6, 7: 8 - l5 - l6}[i]):
                dma2(pos); pos += 1
    stamp(4)
    a("s_waitcnt lgkmcnt(0)")
    a(f"buffer_load_dword v{vN}, v{vNA}, s[44:47], 0 offen sc1")
    ph2_scalars()
    acc2_zero()
    a("s_waitcnt vmcnt(0)")
    poll_issue(0)
    acc2_bias()
    stage0()
    stamp(5)
    a("s_barrier")
    stamp(6)
    poll_issue(1)
    dma2(8); dma2(9)
    a("s_waitcnt vmcnt(9) lgkmcnt(0)")
    a("s_barrier")
    dma2(10)
    a("s_branch L_PHASE2")

    a.label("L_C")
    common_setup()
    a(f"""v_and_b32 v{t0}, 31, v{vLane}
    v_lshrrev_b32 v{t1}, 1, v{t0}
    v_and_b32 v{t1}, 7, v{t1}
    v_lshrrev_b32 v{t2}, 5, v{vLane}
    v_xor_b32 v{t1}, v{t1}, v{t2}
    v_lshlrev_b32 v{t0}, 7, v{t0}
    v_lshl_add_u32 v{t0}, v{vQ}, 12, v{t0}""")
    for t in range(4):
        a(f"v_xor_b32 v{vAX+t}, {2*t}, v{t1}")
        a(f"v_lshl_add_u32 v{vAX+t}, v{vAX+t}, 4, v{t0}")
        a(f"v_add_u32 v{vAX+4+t}, {2*SLOT}, v{vAX+t}")
    bA = fw[0]; bB = fw[1]
    for i in range(12): a(f"v_mov_b32 v{bB+i}, 0")
    a(f"""v_mov_b32 v{bA+2}, 0
    v_mov_b32 v{bA+3}, 0
    v_mul_u32_u24 v{bB+4}, 0x3f80, v{t2}
    v_xor_b32 v{bB}, 0x3f80, v{bB+4}
    v_mov_b32 v{bB+9}, v{bB}
    v_lshlrev_b32 v{t1}, 3, v{t2}
    v_bfe_u32 v{t0}, v{vLane}, 2, 2
    v_add_u32 v{t0}, v{t0}, v{t1}
    v_mul_u32_u24 v{t0}, 192, v{t0}
    v_bfe_u32 v{t1}, v{vLane}, 4, 1
    v_lshl_add_u32 v{t0}, v{t1}, 5, v{t0}
    v_and_b32 v{t1}, 3, v{vLane}
    v_lshl_add_u32 v{t0}, v{t1}, 3, v{t0}
    v_add_u32 v{vAW}, 16384, v{t0}
    v_add_u32 v{vAW+1}, {2*SLOT+16384}, v{t0}
    v_mov_b32 v{vC0}, 0x{f32bits(C0):08x}
    v_mov_b32 v{vC0+1}, 0x{f32bits(C0):08x}
    s_mov_b32 s48, 0x{f32bits(C1):08x}
    s_mov_b32 s49, 0x{f32bits(C1):08x}
    v_bfe_u32 v{t0}, v{vLane}, 4, 1
    v_mul_u32_u24 v{t0}, {MBS}, v{t0}
    v_add_u32 v{t0}, v{t0}, v{vFA}
    v_lshlrev_b32 v{t2}, 1, v{vLane}
    v_lshlrev_b32 v{vFS}, 24, v{vLane}
    s_mul_i32 s58, s24, 192
    s_lshl_b32 s59, s6, 2
    s_add_u32 s59, s59, s7
    s_mul_i32 s62, s59, {MBS}
    s_mul_i32 s61, s24, 6144
    s_add_u32 s50, s62, s61
    s_add_u32 s51, s50, 4096
    s_lshl_b32 s63, s24, 2
    s_add_u32 s62, s62, s63
    s_add_u32 s66, s62, {MB_BYTES}
    s_mul_i32 s63, s25, {2*MBS}
    s_add_u32 s63, s63, {MB_BYTES}
    s_lshr_b32 s59, s59, 1
    s_waitcnt lgkmcnt(0)""")
    stamp(1)
    a(f"""s_mov_b32 s32, s12
    s_mov_b32 s33, s13
    s_mov_b32 s34, 2752
    s_mov_b32 s35, 0x20000
    buffer_load_ushort v{bA}, v{t2}, s[32:35], s58 offen
    buffer_load_ushort v{bA+1}, v{t2}, s[32:35], s58 offen offset:128""")
    common_srds()
    a(f"""s_or_b32 s61, s4, s7
    s_cmp_lg_u32 s61, 0
    s_cbranch_scc1 L_NOLEAD
    buffer_load_dword v{vF}, v{t0}, s[40:43], s63 offen sc1
    v_bfe_u32 v{t1}, v{vLane}, 4, 1
    v_sub_u32 v{t1}, v{vLane}, v{t1}
    v_add_u32 v{t1}, 2, v{t1}
    s_waitcnt vmcnt(0)
    v_lshrrev_b32 v{t1}, v{t1}, v{vF}
    v_and_b32 v{t1}, 1, v{t1}
    v_cmp_eq_u32 vcc, 0, v{t1}
    s_lshl_b32 s30, s25, 2
    s_nop 0
    s_and_b32 s31, vcc_lo, 0x7fff
    s_lshl_b32 s31, s31, 2
    s_and_b32 s61, vcc_lo, 0x7fff0000
    s_lshl_b32 s61, s61, 1
    s_or_b32 s31, s31, s61
    s_or_b32 s31, s31, 1
    v_mov_b32 v{t1}, s31
    buffer_store_dword v{t1}, v{vFS}, s[44:47], s30 offen sc1
    s_branch L_LEAD_DONE""")
    a.label("L_NOLEAD")
    a("s_waitcnt vmcnt(0)")
    a.label("L_LEAD_DONE")
    for p in range(3):
        a(f"v_mfma_f32_32x32x16_bf16 {vr(acc+16*p,16)}, {vr(bA,4)}, {vr(bB+4*p,4)}, 0")
    ph2_scalars()
    a("s_mov_b32 s67, 0")
    def rd(c, t, s):
        slot = c % 4
        hi = slot >> 1; off = (slot & 1) * SLOT
        l = [f"ds_read_b128 {vr(fx[s],4)}, v{vAX+4*hi+t} offset:{off}"]
        for p in range(3):
            for q in range(2):
                l.append(f"ds_read_b64_tr_b16 {vr(fw[s]+4*p+2*q,2)}, v{vAW+hi} offset:{off+t*3072+q*768+p*64}")
        return l
    def mf(s):
        return [f"v_mfma_f32_32x32x16_bf16 {vr(acc+16*p,16)}, {vr(fw[s]+4*p,4)}, {vr(fx[s],4)}, {vr(acc+16*p,16)}" for p in range(3)]
    def inter(m, r):
        for x in [m[0], r[0], r[1], r[2], m[1], r[3], r[4], m[2], r[5], r[6]]:
            a(x)
    vm = Cnt()
    def hstore(idx):
        so = "s50" if idx < 4 else "s51"
        a(f"buffer_store_dwordx4 {vr(O[idx],4)}, v{vOH}, s[40:43], {so} offen offset:{(idx%4)*1024} sc1")
        vm.issue(f"st{idx}")
    def flag(lvl):
        a(f"buffer_store_dword v{vFV+lvl-1}, v{vFS}, s[40:43], s66 offen sc1")
        vm.issue(f"f{lvl}")
    for c in range(7):
        a("s_barrier")
        if c == 0: stamp(2)
        if c == 5:
            a(f"buffer_load_dword v{vN}, v{vNA}, s[44:47], 0 offen sc1")
            b2_load()
        for x in rd(c, 0, (4*c) % 3): a(x)
        if c >= 1:
            inter(mf((4*c - 1) % 3), rd(c, 1, (4*c+1) % 3))
        else:
            for x in rd(c, 1, (4*c+1) % 3): a(x)
        a("s_waitcnt lgkmcnt(7)")
        inter(mf((4*c) % 3), rd(c, 2, (4*c+2) % 3))
        a("s_waitcnt lgkmcnt(7)")
        inter(mf((4*c+1) % 3), rd(c, 3, (4*c+3) % 3))
        a("s_waitcnt lgkmcnt(7)")
        for x in mf((4*c+2) % 3): a(x)
        a("s_waitcnt lgkmcnt(0)")
        if c == 6:
            for x in mf(27 % 3): a(x)
    a("s_barrier")
    stamp(3)
    LX = lambda t: lastbuf + 4*t
    LW = lambda p, t: lastbuf + 16 + 16*p + 4*t
    def rx(t): return f"ds_read_b128 {vr(LX(t),4)}, v{vAX+4+t} offset:{SLOT}"
    def rw(p, t): return [f"ds_read_b64_tr_b16 {vr(LW(p,t)+2*q,2)}, v{vAW+1} offset:{SLOT+t*3072+q*768+p*64}" for q in range(2)]
    def m(p, t): return f"v_mfma_f32_32x32x16_bf16 {vr(acc+16*p,16)}, {vr(LW(p,t),4)}, {vr(LX(t),4)}, {vr(acc+16*p,16)}"
    for t in range(4):
        a(rx(t))
        for x in rw(0, t): a(x)
    a("s_waitcnt lgkmcnt(9)"); a(m(0, 0))
    for x in rw(1, 0) + rw(1, 1): a(x)
    a("s_waitcnt lgkmcnt(10)"); a(m(0, 1))
    for x in rw(1, 2) + rw(1, 3): a(x)
    a("s_waitcnt lgkmcnt(11)"); a(m(0, 2))
    for x in rw(2, 0) + rw(2, 1): a(x)
    a("s_waitcnt lgkmcnt(12)"); a(m(0, 3))
    for x in rw(2, 2): a(x)
    a("s_waitcnt lgkmcnt(12)"); a(m(1, 0))
    for x in rw(2, 3): a(x)
    a("s_waitcnt lgkmcnt(8)"); a(m(1, 1))
    stamp(4)
    a("s_cmp_eq_u32 s24, 15")
    a("s_cbranch_scc1 L_NOFLAG")
    a("s_nop 1")
    rest = [m(1, 2), m(1, 3), "W0", m(2, 0), m(2, 1), m(2, 2), m(2, 3)]
    cost = 0; nxt = 24
    for ins in gelu8_sc(acc, T, O[0], 48, vC0):
        a(ins)
        cost += 8 if ("exp" in ins or "rcp" in ins) else 4
        if cost >= nxt and rest:
            x = rest.pop(0)
            if x == "W0":
                a("s_waitcnt lgkmcnt(0)"); x = rest.pop(0)
            a(x); nxt = cost + 24
    assert not rest
    hstore(0)
    for ins in gelu8_pk(acc + 8, T, O[1], 48, vC0): a(ins)
    hstore(1)
    a("s_waitcnt vmcnt(2)")
    a.label("L_PN")
    a(f"v_readlane_b32 s31, v{vN}, s59")
    a("s_add_u32 s67, s67, 1")
    a("s_nop 1")
    a("s_cmp_eq_u32 s31, 0")
    a("s_cbranch_scc1 L_PN_RETRY")
    a.label("L_PN_OK")
    stubs.label("L_PN_RETRY")
    stubs(f"s_cmp_gt_u32 s67, {LIM}")
    stubs("s_cbranch_scc1 L_PN_OK")
    stubs("s_sleep 16")
    stubs(f"buffer_load_dword v{vN}, v{vNA}, s[44:47], 0 offen sc1")
    stubs("s_waitcnt vmcnt(0)")
    stubs("s_branch L_PN")
    a(f"v_mov_b32 v{vFV}, s31")
    a(f"v_add_u32 v{vFV+1}, 1, v{vFV}")
    a(f"v_add_u32 v{vFV+2}, 2, v{vFV}")
    a("s_cmp_eq_u32 s24, 14")
    a("s_cbranch_scc1 L_ST14")
    stubs.label("L_ST14")
    stubs("s_waitcnt vmcnt(0)")
    stubs("s_branch L_LASTF")
    for idx in range(2, 6):
        for ins in gelu8_pk(acc + 8*idx, T, O[idx], 48, vC0): a(ins)
        hstore(idx)
        if staged and idx == f1at:
            a(f"s_waitcnt vmcnt({vm.need('st1')})")
            flag(1)
    stamp(5)
    if staged:
        a(f"s_waitcnt vmcnt({vm.need('st3')})")
        flag(2)
    a.label("L_LASTF")
    poll_issue(0)
    acc2_zero(); acc2_bias()
    a(f"s_waitcnt vmcnt({2 if staged else 1})")
    stamp(6)
    flag(3)
    a("s_branch L_C2")
    a.label("L_NOFLAG")
    a("s_waitcnt vmcnt(0) lgkmcnt(0)")
    poll_issue(0)
    acc2_zero(); acc2_bias()
    a("s_waitcnt vmcnt(0)")
    a.label("L_C2")
    a("s_barrier")
    poll_issue(1)
    stage0()
    a("s_waitcnt vmcnt(2) lgkmcnt(0)")
    a("s_barrier")

    a.label("L_PHASE2")
    stamp(7)
    a("s_mov_b32 s67, 0")
    a.label("L_CN")
    a(f"v_readlane_b32 s62, v{vN}, s25")
    a("s_add_u32 s67, s67, 1")
    a("s_nop 1")
    a("s_cmp_eq_u32 s62, 0")
    a("s_cbranch_scc1 L_CN_RETRY")
    a.label("L_CN_OK")
    stubs.label("L_CN_RETRY")
    stubs(f"s_cmp_gt_u32 s67, {LIM}")
    stubs("s_cbranch_scc1 L_CN_OK")
    stubs("s_sleep 16")
    stubs(f"buffer_load_dword v{vN}, v{vNA}, s[44:47], 0 offen sc1")
    stubs("s_waitcnt vmcnt(0)")
    stubs("s_branch L_CN")
    a("s_sub_u32 s62, s62, 1")
    chk(0, 0)
    a("s_cbranch_scc1 L_GO")
    a.label("L_POLL")
    a(f"s_waitcnt vmcnt(0)")
    chk(1, 0)
    a("s_cbranch_scc1 L_GO")
    a("s_add_u32 s67, s67, 1")
    if psleep: a(f"s_sleep {psleep}")
    poll_issue(1)
    a(f"s_cmp_le_u32 s67, {LIM}")
    a("s_cbranch_scc1 L_POLL")
    a.label("L_GO")
    stamp(8)
    vm = Cnt()
    def hload(s):
        if s % 2 == 0: goff(s >> 1, 11, "s66")
        a(f"buffer_load_dwordx4 {vr(fh[s],4)}, v{vOH}, s[36:39], s66 offen offset:{(s&1)*1024} sc1")
        vm.issue(f"h{s}")
    def spin(st, tag):
        chk(0, st)
        a(f"s_cbranch_scc0 L_SP{tag}")
        a.label(f"L_SR{tag}")
        stubs.label(f"L_SP{tag}")
        poll_issue(0, stubs)
        stubs("s_add_u32 s67, s67, 1")
        stubs("s_waitcnt vmcnt(0)")
        chk(0, st, stubs)
        stubs(f"s_cbranch_scc1 L_SR{tag}")
        stubs(f"s_cmp_le_u32 s67, {LIM}")
        stubs(f"s_cbranch_scc1 L_SP{tag}")
        stubs(f"s_branch L_SR{tag}")
    def wreads(s):
        pos = s >> 1
        off = w2_lds(pos) + (s & 1) * 2048
        k = off >> 16
        off -= k << 16
        return [f"ds_read_b64_tr_b16 {vr(fw2[s&1]+4*p+2*q,2)}, v{vAW2+2*k+p} offset:{off+q*1024}" for p in range(2) for q in range(2)]
    nxt = 0
    ok_upto = 6 if staged else 22
    def issue_upto(n):
        nonlocal nxt
        while nxt < min(n, ok_upto, 22):
            hload(nxt); nxt += 1
            if staged and nxt in (2, p2at + 1):
                poll_issue(0); vm.issue("poll")
    issue_upto(PF)
    for s in range(22):
        if s + 1 == 16:
            a("s_waitcnt lgkmcnt(0)")
            a("s_barrier")
        if 2 <= s + 1 < 22:
            for x in wreads(s + 1): a(x)
        a(f"s_waitcnt vmcnt({vm.need(f'h{s}')})" + (f" lgkmcnt({4 if s + 1 < 22 else 0})" if s >= 2 else ""))
        if s == 0: stamp(9)
        if s == 21: stamp(10)
        wf = st0 + 8 * s if s < 2 else fw2[s & 1]
        for p in range(2):
            a(f"v_mfma_f32_32x32x16_bf16 {vr(acc2+16*p,16)}, {vr(wf+4*p,4)}, {vr(fh[s],4)}, {vr(acc2+16*p,16)}")
        if staged and s in (1, p2at):
            a(f"s_waitcnt vmcnt({vm.need('poll')})")
            spin(1 if s == 1 else 2, s)
            ok_upto = 14 if s == 1 else 22
        issue_upto(s + 1 + PF)
    stamp(11)
    a("s_nop 10")
    for o in range(1, 4):
        if o == 2: a("s_nop 1")
        for e in range(2):
            a(f"ds_write_b128 v{vRW+o-1}, {vr(acc2+8*o+4*e,4)} offset:{(o-1)*2048+e*1024}")
    a("s_waitcnt lgkmcnt(0)")
    a("s_barrier")
    stamp(12)
    rdm = fh[0]
    for o in range(3):
        for e in range(2):
            a(f"ds_read_b128 {vr(rdm+8*o+4*e,4)}, v{vRR} offset:{o*2048+e*1024}")
    for o in range(3):
        a(f"s_waitcnt lgkmcnt({4-2*o})")
        for i in range(0, 8, 2):
            a(f"v_pk_add_f32 {vr(acc2+i,2)}, {vr(acc2+i,2)}, {vr(rdm+8*o+i,2)}")
    od = fw2[0]
    for i in range(4):
        a(f"v_cvt_pk_bf16_f32 v{od+i}, v{acc2+2*i}, v{acc2+2*i+1}")
    a("s_nop 1")
    a(f"v_permlane32_swap_b32 v{od}, v{od+2}")
    a(f"v_permlane32_swap_b32 v{od+1}, v{od+3}")
    a(f"buffer_store_dwordx4 {vr(od,4)}, v{vOO}, s[52:55], 0 offen")
    if prof:
        stamp(13)
        a("s_waitcnt vmcnt(0)")
        stamp(14)
        a("s_waitcnt lgkmcnt(0)")
        a(f"s_mov_b32 s{SB+30}, s67")
        a(f"s_mov_b32 s{SB+31}, 0")
        a(f"s_add_u32 s44, s22, {128<<20}")
        a(f"s_addc_u32 s45, s23, 0")
        a("s_mov_b32 s46, 0x1000000")
        a("s_mov_b32 s47, 0x20000")
        a("s_lshl_b32 s48, s2, 3")
        a("s_add_u32 s48, s48, s7")
        a(f"s_mul_i32 s48, s48, {NST*8}")
        a("v_mov_b32 v1, 0")
        for i in range(NST):
            a(f"v_mov_b32 v2, s{SB+2*i}")
            a(f"v_mov_b32 v3, s{SB+2*i+1}")
            a(f"buffer_store_dwordx2 v[2:3], v1, s[44:47], s48 offen offset:{8*i}")
            a("s_nop 1")
    a.label("L_END")
    a("s_endpgm")
    return a.text() + stubs.text(), nv

def build(out, **kw):
    k, nv = gen(**kw)
    s = HEADER + "; @launch grid=(256,1,1) block=(512,1,1) lds=163840\n"
    s += '.amdgcn_target "amdgcn-amd-amdhsa--gfx950"\n.text\n'
    s += kernel_start(NAME) + k
    s += '.section .rodata,"a"\n' + kernel_desc(NAME, nv, 102)
    open(out, "w").write(s)
    print(out, "vgprs", nv)

if __name__ == "__main__":
    for k in range(4): print(k, [grp(p, k) for p in range(11)], [hex(mask(k, s)) for s in range(3)])
    build("v15.s"); build("v15p.s", prof=1); build("v15_ns.s", staged=False); build("v15p_ns.s", staged=False, prof=1); build("v15_f3.s", f1at=3); build("v15_f5.s", f1at=5); build("v15_p7.s", p2at=7)
```

```python
import sys
from asmlib import *
from spinlib import spin_kernel
import gen_v15
NAME = gen_v15.NAME
def main(out, idx, mx, **kw):
    k, nv = gen_v15.gen(prof=1, **kw)
    outs = [(0, i, True) for i in range(15)]
    s = HEADER
    s += f"; @launch kernel={NAME} grid=(256,1,1) block=(512,1,1) lds=163840\n"
    s += "; @launch kernel=spin_kernel grid=(1,1,1) block=(64,1,1) lds=512\n"
    s += '.amdgcn_target "amdgcn-amd-amdhsa--gfx950"\n.text\n'
    s += kernel_start(NAME) + k
    s += kernel_start("spin_kernel") + spin_kernel(1, 16, 0, idx, mx, outs, nwaves=2048)
    s += '.section .rodata,"a"\n' + kernel_desc(NAME, nv, 102) + kernel_desc("spin_kernel", 96, 32)
    open(out, "w").write(s)
for nm, idx, mx in (("s0min", 0, False), ("b0max", 2, True), ("b7max", 3, True), ("gomax", 8, True), ("endmax", 14, True), ("b0min", 2, False), ("b7min", 3, False), ("s1max", 1, True), ("ph2max", 7, True), ("h21max", 10, True), ("gomin", 8, False), ("s0max", 0, True)):
    main(f"c2_{nm}.s", idx, mx, staged=False)
```

```python
import sys, math
from asmlib import *
from gen_v3 import gelu8_pk, gelu8_sc

MB_BYTES = 86 * 1024
MBS = 88 * 1024
H_BYTES = 64 * MBS
C0 = -2.0 * math.sqrt(2.0 / math.pi) * math.log2(math.e)
C1 = C0 * 0.044715
NAME = "standalone__dense_activation_gelu__prompt_kernel"
SLOT = 28672
DBASE = 4 * SLOT
NST = 16
LIM = 0x100000

def w2_lds(pos):
    if pos == 10: pos = 0
    if pos < 3:
        return DBASE + pos * 16384
    return (pos - 3) * 16384

def grp(pos, kq):
    i = 4 * pos + kq
    p = (i >= 15) + (i >= 29)
    ft = i - (0, 15, 29)[p]
    return ft, p, 3 * ft + p
STG = [0]*3 + [1]*4 + [2]*4
def mask(kq, st):
    m = 0
    for pos in range(11):
        ft, p, g = grp(pos, kq)
        if STG[pos] == st and g < 43: m |= 1 << ft
    return m

class Cnt:
    def __init__(self): self.q = []
    def issue(self, tag, n=1): self.q += [tag] * n
    def need(self, tag):
        idx = max(i for i, t in enumerate(self.q) if t == tag)
        return len(self.q) - 1 - idx

def gen(prof=0, PF=8, psleep=2, lsp=(1,2,3,4), staged=False, f1at=4, cpf=False, p2at=9, LA=11, pre1=11, bat=0, early=5, ldel=0, late_st=False, rsplit=4, deep=True, prio2=None, bs_at=5, trot=0, npz=0):
    a = Asm(); stubs = Asm()
    SB = 70
    def stamp(i):
        if prof == 1 or (prof >= 3 and i == 0):
            a(f"s_memrealtime s[{SB+2*i}:{SB+2*i+1}]")
    def fstamp(i):
        if prof == 2:
            a(f"s_memrealtime s[{SB+2*i}:{SB+2*i+1}]")
    def gst(i, cyc=False):
        if prof == 4:
            a(f"{'s_memtime' if cyc else 's_memrealtime'} s[{SB+2*i}:{SB+2*i+1}]")
    def xst(i):
        if prof == 3:
            a(f"s_memrealtime s[{SB+2*i}:{SB+2*i+1}]")
    a("s_load_dwordx16 s[8:23], s[0:1], 0")
    stamp(0)
    if prof == 3:
        for i in range(2, 32): a(f"s_mov_b32 s{SB+i}, 0")
    a("s_cmp_ge_u32 s2, 256")
    a("s_cbranch_scc1 L_END")
    a("""v_lshrrev_b32 v2, 6, v0
    v_and_b32 v1, 63, v0
    s_and_b32 s3, s2, 7
    v_readfirstlane_b32 s7, v2
    s_bfe_u32 s4, s2, 0x30003
    s_lshr_b32 s5, s2, 6
    s_and_b32 s6, s3, 3
    s_lshl_b32 s30, s5, 2
    s_add_u32 s6, s6, s30
    s_lshr_b32 s24, s3, 2
    s_lshl_b32 s24, s24, 3
    s_add_u32 s24, s24, s4
    s_and_b32 s28, s7, 3
    v_and_b32 v2, 3, v2
    s_cmp_lt_u32 s7, 4
    s_cbranch_scc1 L_C""")
    vLane = 1; vQ = 2
    R = RegAlloc(3)
    t0 = R.alloc(); t1 = R.alloc(); t2 = R.alloc()
    vAW2 = R.alloc(12); vOH = R.alloc(); vOH2 = R.alloc(); vRW = R.alloc(3); vRR = R.alloc(); vOO = R.alloc(); vN = R.alloc(); vNA = R.alloc(); vFA = R.alloc()
    vF = R.alloc(2); vD = R.alloc()
    vb2 = R.alloc(4, 2)
    base = R.n
    R1 = RegAlloc(base)
    vAX = R1.alloc(8); vAW = R1.alloc(2); vFS = R1.alloc(); vFV = R1.alloc(3); vC0 = R1.alloc(2, 2)
    acc = R1.alloc(48, 4)
    fx = [R1.alloc(4, 4) for _ in range(3)]
    fw = [R1.alloc(12, 4) for _ in range(3)]
    T = R1.alloc(8, 4); O = [R1.alloc(4, 4) for _ in range(6)]
    RL = RegAlloc(base)
    vOX = RL.alloc(4); vOW = RL.alloc(3); vOW2 = RL.alloc(4)
    assert RL.n <= acc
    R2 = RegAlloc(R1.n)
    acc2 = R2.alloc(32, 4)
    fw2 = [R2.alloc(8, 4) for _ in range(2)]
    st0 = R2.alloc(16, 4)
    lastbuf = acc2
    R2b = RegAlloc(acc)
    fh = [R2b.alloc(4, 4) for _ in range(22)]
    assert R2b.n <= T
    nv = R2.n

    def common_setup():
        a("""s_add_u32 s30, s3, 1
        s_and_b32 s30, s30, 3
        s_lshl_b32 s30, s30, 1
        s_lshl_b32 s25, s5, 3
        s_add_u32 s25, s25, s30
        s_lshr_b32 s30, s3, 2
        s_add_u32 s25, s25, s30
        s_lshr_b32 s29, s7, 2
        s_lshl_b32 s26, s28, 12
        s_mul_i32 s27, s28, 11""")
        a(f"""v_lshrrev_b32 v{t0}, 5, v{vLane}
        v_lshlrev_b32 v{t0}, 4, v{t0}
        v_bfe_u32 v{t1}, v{vLane}, 2, 3
        v_add_u32 v{t0}, v{t0}, v{t1}
        v_lshlrev_b32 v{t0}, 7, v{t0}
        v_bfe_u32 v{t1}, v{vLane}, 3, 2
        v_xor_b32 v{t1}, v{t1}, v{vQ}
        v_lshl_add_u32 v{t0}, v{t1}, 5, v{t0}
        v_and_b32 v{t1}, 3, v{vLane}
        v_lshl_add_u32 v{t0}, v{t1}, 3, v{t0}
        v_lshl_add_u32 v{vAW2}, v{vQ}, 12, v{t0}
        v_xor_b32 v{vAW2+1}, 32, v{vAW2}
        v_xor_b32 v{vAW2+2}, 64, v{vAW2}
        v_xor_b32 v{vAW2+3}, 0x60, v{vAW2}
        v_add_u32 v{vAW2+4}, 65536, v{vAW2}
        v_add_u32 v{vAW2+5}, 65536, v{vAW2+1}
        v_add_u32 v{vAW2+6}, 65536, v{vAW2+2}
        v_add_u32 v{vAW2+7}, 65536, v{vAW2+3}
        v_add_u32 v{vAW2+8}, 131072, v{vAW2}
        v_add_u32 v{vAW2+9}, 131072, v{vAW2+1}
        v_add_u32 v{vAW2+10}, 131072, v{vAW2+2}
        v_add_u32 v{vAW2+11}, 131072, v{vAW2+3}
        v_lshrrev_b32 v{t0}, 4, v{vLane}
        v_lshlrev_b32 v{t0}, 9, v{t0}
        v_and_b32 v{t1}, 15, v{vLane}
        v_lshl_add_u32 v{vOH2}, v{t1}, 4, v{t0}
        v_lshlrev_b32 v{vOH}, 4, v{vLane}
        s_mul_i32 s30, s29, 24576
        v_add_u32 v{t0}, s30, v{vOH}""")
        for o in range(1, 4):
            a(f"v_xor_b32 v{t1}, {o}, v{vQ}")
            a(f"v_mul_u32_u24 v{t1}, 6144, v{t1}")
            a(f"v_add_u32 v{vRW+o-1}, v{t1}, v{t0}")
        a(f"v_mul_u32_u24 v{t1}, 6144, v{vQ}")
        a(f"v_add_u32 v{vRR}, v{t1}, v{t0}")
        a(f"""v_and_b32 v{t0}, 31, v{vLane}
        v_lshlrev_b32 v{vNA}, 2, v{t0}
        v_lshrrev_b32 v{t1}, 5, v{vLane}
        v_lshlrev_b32 v{t1}, 4, v{t1}
        v_lshl_add_u32 v{vOO}, v{t0}, 10, v{t1}
        v_and_b32 v{vFA}, 15, v{vLane}
        v_lshlrev_b32 v{vFA}, 2, v{vFA}
        s_lshl_b32 s30, s25, 1
        s_add_u32 s30, s30, s29
        s_mul_i32 s68, s30, {MBS}
        s_lshl_b32 s69, s4, 7
        s_lshl_b32 s31, s28, 5
        s_add_u32 s69, s69, s31
        s_lshl_b32 s67, s30, 15
        s_add_u32 s67, s67, s69""")
    def goff(pos, shift, dst):
        a(f"s_add_u32 {dst}, s27, {pos}")
        a(f"s_lshl_b32 {dst}, {dst}, {shift}")
    def common_srds():
        a(f"""s_mov_b32 s40, s22
        s_mov_b32 s41, s23
        s_mov_b32 s42, {H_BYTES}
        s_mov_b32 s43, 0x20000
        s_mov_b32 s44, s20
        s_mov_b32 s45, s21
        s_mov_b32 s46, 256
        s_mov_b32 s47, 0x20000
        s_add_u32 s52, s18, s67
        s_addc_u32 s53, s19, 0
        s_sub_u32 s54, 2097152, s67
        s_mov_b32 s55, 0x20000""")
    def b2_load():
        a("""s_mov_b32 s32, s16
        s_mov_b32 s33, s17
        s_mov_b32 s34, 1024
        s_mov_b32 s35, 0x20000""")
        a(f"v_lshrrev_b32 v{t1}, 4, v{vLane}")
        a(f"v_lshlrev_b32 v{t1}, 3, v{t1}")
        a(f"buffer_load_dwordx2 {vr(vb2,2)}, v{t1}, s[32:35], s69 offen")
    def WS(pos):
        return [st0, fw2[0], O[0]][pos % 3] if deep else (st0 if pos % 2 == 0 else fw2[0])
    def wrd(pos):
        off = w2_lds(pos); k = off >> 16; off -= k << 16
        W = WS(pos)
        return [f"ds_read_b64_tr_b16 {vr(W+4*o+2*q,2)}, v{vAW2+4*k+o} offset:{off+q*1024}" for o in range(4) for q in range(2)]
    def stage0():
        for x in wrd(0): a(x)
    def ph2_scalars():
        a(f"s_add_u32 s63, s68, {MB_BYTES}")
        a("s_add_u32 s36, s22, s68")
        a("s_addc_u32 s37, s23, 0")
        a(f"s_mov_b32 s38, {MB_BYTES}")
        a("s_mov_b32 s39, 0x20000")
        a("s_lshl_b32 s31, s28, 4")
        a("s_mov_b32 s60, 0x00f8000f")
        a("s_mov_b32 s61, 0x78000780")
        a("s_lshr_b64 s[60:61], s[60:61], s31")
        a(f"s_and_b32 s56, s60, 0xffff")
    def acc2_zero():
        for i in range(8, 32):
            a(f"v_mov_b32 v{acc2+i}, 0")
    def acc2_bias():
        for i in range(4):
            a(f"v_lshlrev_b32 v{acc2+2*i}, 16, v{vb2+(i&1)}")
            a(f"v_and_b32 v{acc2+2*i+1}, 0xffff0000, v{vb2+(i&1)}")
    def poll_issue(k, o=a):
        o(f"buffer_load_dword v{vF+k}, v{vFA}, s[40:43], s63 offen sc1")
    def chk(k, st, o=a):
        lvl = st + 1 if staged else 3
        o(f"v_subrev_u32 v{vD}, s62, v{vF+k}")
        o(f"v_subrev_u32 v{vD}, {lvl}, v{vD}")
        o(f"v_cmp_ge_u32 vcc, {3-lvl}, v{vD}")
        o("s_nop 1")
        o(f"s_and_b32 s31, vcc_lo, s{56+st}")
        o(f"s_cmp_eq_u32 s31, s{56+st}")

    a.c("loader waves")
    a("""s_add_u32 s62, s5, s4
    s_and_b32 s62, s62, 1
    s_lshl_b32 s62, s62, 2
    s_lshr_b32 s30, s3, 2
    s_add_u32 s30, s30, s3
    s_and_b32 s30, s30, 1
    s_lshl_b32 s30, s30, 1
    s_add_u32 s62, s62, s30""")
    a(f"""v_lshrrev_b32 v{t0}, 3, v{vLane}
    v_lshl_add_u32 v{t0}, v{vQ}, 5, v{t0}
    v_lshlrev_b32 v{t0}, 10, v{t0}
    v_lshrrev_b32 v{t1}, 4, v{vLane}
    v_and_b32 v{t2}, 7, v{vLane}
    v_xor_b32 v{t1}, v{t1}, v{t2}
    v_lshl_add_u32 v{vOX}, v{t1}, 4, v{t0}
    v_xor_b32 v{t1}, 4, v{t1}
    v_lshl_add_u32 v{vOX+1}, v{t1}, 4, v{t0}
    v_add_u32 v{vOX+1}, {8192-1024}, v{vOX+1}
    v_add_u32 v{vOX+2}, {2*(8192-1024)}, v{vOX}
    v_add_u32 v{vOX+3}, {2*(8192-1024)}, v{vOX+1}
    v_mul_u32_u24 v{t0}, 192, v{vQ}
    v_add_u32 v{t0}, v{t0}, v{vLane}""")
    for j in range(3):
        if j:
            a(f"v_add_u32 v{t0}, 64, v{t0}")
        a(f"v_mul_u32_u24 v{t1}, 43691, v{t0}")
        a(f"v_lshrrev_b32 v{t1}, 19, v{t1}")
        a(f"v_mul_u32_u24 v{t2}, 12, v{t1}")
        a(f"v_sub_u32 v{t2}, v{t0}, v{t2}")
        a(f"v_mul_u32_u24 v{t1}, 2752, v{t1}")
        a(f"v_lshl_add_u32 v{vOW+j}, v{t2}, 4, v{t1}")
        if j:
            a(f"v_subrev_u32 v{vOW+j}, {1024*j}, v{vOW+j}")
    a("""s_lshl_b32 s56, s28, 12
    s_mul_i32 s57, s28, 3072
    s_add_u32 s57, s57, 16384
    s_mul_i32 s58, s24, 192
    s_lshl_b32 s59, s6, 17
    s_sub_u32 s38, 1409024, s58
    s_cmp_eq_u32 s24, 15
    s_cselect_b32 s38, 0, s38
    s_cselect_b32 s34, 0, 131072
    s_mov_b32 s35, 0x20000
    s_mov_b32 s39, 0x20000
    s_waitcnt lgkmcnt(0)""")
    stamp(1); xst(1)
    a("""s_add_u32 s32, s8, s59
    s_addc_u32 s33, s9, 0
    s_add_u32 s36, s10, s58
    s_addc_u32 s37, s11, 0""")
    items = []
    for c in range(8):
        slot = c % 4
        for j in range(7):
            l = []
            if j == 0:
                l += [f"s_add_u32 m0, s56, {slot*SLOT}", "s_lshl_b32 s63, s62, 7"]
            if j == 4:
                l += [f"s_add_u32 m0, s57, {slot*SLOT}", "s_mul_i32 s63, s62, 176128", "s_add_u32 s62, s62, 1", "s_and_b32 s62, s62, 7"]
            if j < 4: l.append(f"buffer_load_dwordx4 v{vOX+j}, s[32:35], s63 offen offset:{1024*j} lds")
            else: l.append(f"buffer_load_dwordx4 v{vOW+j-4}, s[36:39], s63 offen offset:{1024*(j-4)} lds")
            items.append((l, f"c{c}", c - 3))
    W2B = {0: -9, 1: -9, 2: -9, 3: 5, 4: 6, 5: 6, 6: 7, 7: 7}
    for pos in range(early):
        for j in range(4):
            items.append((("W2", pos, j), f"p{pos}", W2B[pos]))
    vmL = Cnt(); ptr = [0]
    def emit(n, bar):
        while ptr[0] < min(n, len(items)) and items[ptr[0]][2] <= bar:
            l, tag, _ = items[ptr[0]]
            if l[0] == "W2":
                _, pos, j = l
                if j == 0:
                    a(f"s_add_u32 m0, s26, {w2_lds(pos)}")
                    goff(pos, 15, "s66")
                a(f"buffer_load_dwordx4 v{vOW2+j}, s[48:51], s66 offen offset:{1024*j} lds")
            else:
                for x in l: a(x)
            vmL.issue(tag); ptr[0] += 1
    def dma2(pos):
        a(f"s_add_u32 m0, s26, {w2_lds(pos)}")
        goff(pos, 15, "s66")
        for j in range(4):
            a(f"buffer_load_dwordx4 v{vOW2+j}, s[48:51], s66 offen offset:{1024*j} lds")
    emit(pre1, -1); xst(2)
    common_setup()
    common_srds()
    a(f"""v_lshrrev_b32 v{t0}, 3, v{vLane}
    v_bfe_u32 v{t1}, v{vLane}, 4, 2
    v_lshlrev_b32 v{t1}, 1, v{t1}
    v_and_b32 v{t2}, 7, v{vLane}
    v_xor_b32 v{t1}, v{t1}, v{t2}
    v_lshlrev_b32 v{t0}, 10, v{t0}
    v_lshl_add_u32 v{vOW2}, v{t1}, 4, v{t0}""")
    for j in range(1, 4):
        a(f"v_add_u32 v{vOW2+j}, {j*(8192-1024)}, v{vOW2}")
    a("""s_lshl_b32 s30, s4, 7
    s_add_u32 s48, s14, s30
    s_addc_u32 s49, s15, 0
    s_sub_u32 s50, 1409024, s30
    s_mov_b32 s51, 0x20000""")
    if lsp:
        a("""s_lshl_b32 s30, s2, 2
        s_add_u32 s30, s30, s28
        s_mul_i32 s30, s30, 1376
        s_and_b32 s30, s30, 0xffffffc0
        s_add_u32 s58, s14, s30
        s_addc_u32 s59, s15, 0
        s_lshr_b32 s30, s2, 3
        s_mul_i32 s30, s30, 43
        s_mul_i32 s31, s28, 11
        s_add_u32 s30, s30, s31
        s_min_u32 s30, s30, 1365
        s_lshl_b32 s30, s30, 10
        s_add_u32 s60, s14, s30
        s_addc_u32 s61, s15, 0""")
        lds_ = []
        for i in range(22):
            lds_.append(f"s_load_dword s31, s[60:61], {(i//2)*1024+384+(i&1)*64}")
            lds_.append(f"s_load_dword s31, s[58:59], {min(i*64, 1372)}")
        per = (len(lds_) + len(lsp) - 1) // len(lsp)
    xst(3)
    for i in range(8):
        la = LA[i] if isinstance(LA, (list, tuple)) else LA
        emit(7 * (i + 1) + la, i - 1)
        fstamp(2*i)
        a(f"s_waitcnt vmcnt({vmL.need(f'c{i}')})")
        fstamp(2*i+1)
        if i == 0: xst(4)
        a("s_barrier")
        if i == 0: stamp(2)
        if i == 7: stamp(3)
        if lsp and i in lsp:
            for x in lds_[lsp.index(i)*per:(lsp.index(i)+1)*per]: a(x)
    emit(999, 7)
    b2_load()
    stamp(4)
    a("s_waitcnt lgkmcnt(0)")
    if npz:
        a(f"s_add_u32 s30, s27, {early}")
        a("s_lshl_b32 s30, s30, 5")
        a("s_lshr_b32 s31, s2, 3")
        a(f"s_mul_i32 s31, s31, {(npz+15)//16}")
        a("s_add_u32 s30, s30, s31")
        a("s_min_u32 s30, s30, 1368")
        a("s_lshl_b32 s30, s30, 10")
        a("s_add_u32 s64, s14, s30")
        a("s_addc_u32 s65, s15, 0")
    a(f"buffer_load_dword v{vN}, v{vNA}, s[44:47], 0 offen sc1")
    ph2_scalars()
    for i in range(npz): a(f"s_load_dword s59, s[64:65], {i*64}")
    acc2_zero()
    a("s_waitcnt vmcnt(0)")
    acc2_bias()
    stage0()
    stamp(5); xst(12)
    a("s_barrier")
    stamp(6)
    if ldel: a(f"s_sleep {ldel}")
    if trot:
        n = 10 - early
        a(f"s_mul_i32 s64, s5, {trot}")
        for k in range(n):
            a(f"s_cmp_ge_u32 s64, {n}")
            a(f"s_cselect_b32 s65, {n}, 0")
            a("s_sub_u32 s64, s64, s65")
            a("s_lshl_b32 s65, s64, 14")
            a("s_add_u32 s65, s65, s26")
            a(f"s_add_u32 m0, s65, {w2_lds(early)}")
            a("s_add_u32 s66, s64, s27")
            a(f"s_add_u32 s66, s66, {early}")
            a("s_lshl_b32 s66, s66, 15")
            for j in range(4):
                a(f"buffer_load_dwordx4 v{vOW2+j}, s[48:51], s66 offen offset:{1024*j} lds")
            a("s_add_u32 s64, s64, 1")
    else:
        for pos in range(early, 10): dma2(pos)
    poll_issue(0)
    a("s_waitcnt lgkmcnt(0)")
    a("s_barrier")
    dma2(10)
    poll_issue(1)
    a("s_waitcnt vmcnt(5)")
    a("s_branch L_PHASE2")

    a.label("L_C")
    xst(5)
    common_setup()
    a(f"""v_and_b32 v{t0}, 31, v{vLane}
    v_lshrrev_b32 v{t1}, 1, v{t0}
    v_and_b32 v{t1}, 7, v{t1}
    v_lshrrev_b32 v{t2}, 5, v{vLane}
    v_xor_b32 v{t1}, v{t1}, v{t2}
    v_lshlrev_b32 v{t0}, 7, v{t0}
    v_lshl_add_u32 v{t0}, v{vQ}, 12, v{t0}""")
    for t in range(4):
        a(f"v_xor_b32 v{vAX+t}, {2*t}, v{t1}")
        a(f"v_lshl_add_u32 v{vAX+t}, v{vAX+t}, 4, v{t0}")
        a(f"v_add_u32 v{vAX+4+t}, {2*SLOT}, v{vAX+t}")
    bA = acc2; bB = acc2 + 4
    for i in range(12): a(f"v_mov_b32 v{bB+i}, 0")
    a(f"""v_mov_b32 v{bA+2}, 0
    v_mov_b32 v{bA+3}, 0
    v_mul_u32_u24 v{bB+4}, 0x3f80, v{t2}
    v_xor_b32 v{bB}, 0x3f80, v{bB+4}
    v_mov_b32 v{bB+9}, v{bB}
    v_lshlrev_b32 v{t1}, 3, v{t2}
    v_bfe_u32 v{t0}, v{vLane}, 2, 2
    v_add_u32 v{t0}, v{t0}, v{t1}
    v_mul_u32_u24 v{t0}, 192, v{t0}
    v_bfe_u32 v{t1}, v{vLane}, 4, 1
    v_lshl_add_u32 v{t0}, v{t1}, 5, v{t0}
    v_and_b32 v{t1}, 3, v{vLane}
    v_lshl_add_u32 v{t0}, v{t1}, 3, v{t0}
    v_add_u32 v{vAW}, 16384, v{t0}
    v_add_u32 v{vAW+1}, {2*SLOT+16384}, v{t0}
    v_mov_b32 v{vC0}, 0x{f32bits(C0):08x}
    v_mov_b32 v{vC0+1}, 0x{f32bits(C0):08x}
    s_mov_b32 s48, 0x{f32bits(C1):08x}
    s_mov_b32 s49, 0x{f32bits(C1):08x}
    v_bfe_u32 v{t0}, v{vLane}, 4, 1
    v_mul_u32_u24 v{t0}, {MBS}, v{t0}
    v_add_u32 v{t0}, v{t0}, v{vFA}
    v_lshlrev_b32 v{t2}, 1, v{vLane}
    v_lshlrev_b32 v{vFS}, 24, v{vLane}
    s_mul_i32 s58, s24, 192
    s_lshl_b32 s59, s6, 2
    s_add_u32 s59, s59, s7
    s_mul_i32 s62, s59, {MBS}
    s_mul_i32 s61, s24, 6144
    s_add_u32 s50, s62, s61
    s_add_u32 s51, s50, 4096
    s_lshl_b32 s63, s24, 2
    s_add_u32 s62, s62, s63
    s_add_u32 s66, s62, {MB_BYTES}
    s_mul_i32 s63, s25, {2*MBS}
    s_add_u32 s63, s63, {MB_BYTES}
    s_lshr_b32 s59, s59, 1
    s_waitcnt lgkmcnt(0)""")
    stamp(1); xst(6)
    a(f"""s_mov_b32 s32, s12
    s_mov_b32 s33, s13
    s_mov_b32 s34, 2752
    s_mov_b32 s35, 0x20000
    buffer_load_ushort v{bA}, v{t2}, s[32:35], s58 offen
    buffer_load_ushort v{bA+1}, v{t2}, s[32:35], s58 offen offset:128""")
    common_srds()
    a(f"""s_or_b32 s61, s4, s7
    s_cmp_lg_u32 s61, 0
    s_cbranch_scc1 L_NOLEAD
    buffer_load_dword v{vF}, v{t0}, s[40:43], s63 offen sc1
    v_bfe_u32 v{t1}, v{vLane}, 4, 1
    v_sub_u32 v{t1}, v{vLane}, v{t1}
    v_add_u32 v{t1}, 2, v{t1}
    s_nop 0""")
    a.label("L_NOLEAD")
    xst(7)
    def lead2():
        a(f"""s_or_b32 s61, s4, s7
        s_cmp_lg_u32 s61, 0
        s_cbranch_scc1 L_NOLEAD2
        v_bfe_u32 v{t1}, v{vLane}, 4, 1
        v_sub_u32 v{t1}, v{vLane}, v{t1}
        v_add_u32 v{t1}, 2, v{t1}
        v_lshrrev_b32 v{t1}, v{t1}, v{vF}
        v_and_b32 v{t1}, 1, v{t1}
        v_cmp_eq_u32 vcc, 0, v{t1}
        s_lshl_b32 s30, s25, 2
        s_nop 0
        s_and_b32 s31, vcc_lo, 0x7fff
        s_lshl_b32 s31, s31, 2
        s_and_b32 s61, vcc_lo, 0x7fff0000
        s_lshl_b32 s61, s61, 1
        s_or_b32 s31, s31, s61
        s_or_b32 s31, s31, 1
        v_mov_b32 v{t1}, s31
        buffer_store_dword v{t1}, v{vFS}, s[44:47], s30 offen sc1""")
        a.label("L_NOLEAD2")
    ph2_scalars()
    a("s_mov_b32 s67, 0")
    def rd(c, t, s):
        slot = c % 4
        hi = slot >> 1; off = (slot & 1) * SLOT
        l = [f"ds_read_b128 {vr(fx[s],4)}, v{vAX+4*hi+t} offset:{off}"]
        for p in range(3):
            for q in range(2):
                l.append(f"ds_read_b64_tr_b16 {vr(fw[s]+4*p+2*q,2)}, v{vAW+hi} offset:{off+t*3072+q*768+p*64}")
        return l
    def mf(s, z=False):
        return [f"v_mfma_f32_32x32x16_bf16 {vr(acc+16*p,16)}, {vr(fw[s]+4*p,4)}, {vr(fx[s],4)}, {'0' if z else vr(acc+16*p,16)}" for p in range(3)]
    def inter(m, r):
        for x in [m[0], r[0], r[1], r[2], m[1], r[3], r[4], m[2], r[5], r[6]]:
            a(x)
    vm = Cnt()
    def hstore(idx):
        so = "s50" if idx < 4 else "s51"
        if idx == 5: gst(8)
        if late_st:
            if idx < 5:
                gst(2 + idx); return
            for k in range(5):
                a(f"buffer_store_dwordx4 {vr(O[k],4)}, v{vOH}, s[40:43], {'s50' if k < 4 else 's51'} offen offset:{(k%4)*1024} sc1")
        a(f"buffer_store_dwordx4 {vr(O[idx],4)}, v{vOH}, s[40:43], {so} offen offset:{(idx%4)*1024} sc1")
        vm.issue(f"st{idx}")
        gst(2 + idx)
        if idx == 5: gst(10, True)
    def flag(lvl):
        a(f"buffer_store_dword v{vFV+lvl-1}, v{vFS}, s[40:43], s66 offen sc1")
        vm.issue(f"f{lvl}")
    xst(8)
    for c in range(7):
        fstamp(2*c)
        a("s_barrier")
        fstamp(2*c+1)
        if c == 0: stamp(2)
        if c == 5:
            a(f"buffer_load_dword v{vN}, v{vNA}, s[44:47], 0 offen sc1")
            b2_load()
        for x in rd(c, 0, (4*c) % 3): a(x)
        if c >= 1:
            inter(mf((4*c - 1) % 3), rd(c, 1, (4*c+1) % 3))
        else:
            for x in rd(c, 1, (4*c+1) % 3): a(x)
        a("s_waitcnt lgkmcnt(7)")
        inter(mf((4*c) % 3, c == 0), rd(c, 2, (4*c+2) % 3))
        a("s_waitcnt lgkmcnt(7)")
        inter(mf((4*c+1) % 3), rd(c, 3, (4*c+3) % 3))
        a("s_waitcnt lgkmcnt(7)")
        for x in mf((4*c+2) % 3): a(x)
        if c == bat:
            a("s_waitcnt vmcnt(0)")
            for p in range(3):
                a(f"v_mfma_f32_32x32x16_bf16 {vr(acc+16*p,16)}, {vr(bA,4)}, {vr(bB+4*p,4)}, {vr(acc+16*p,16)}")
            lead2()
        a("s_waitcnt lgkmcnt(0)")
        if c == 6:
            for x in mf(27 % 3): a(x)
    fstamp(14)
    a("s_barrier")
    fstamp(15); gst(12); gst(13, True)
    stamp(3)
    LX = lambda t: lastbuf + 4*t
    LW = lambda p, t: lastbuf + 16 + 16*p + 4*t
    def rx(t): return f"ds_read_b128 {vr(LX(t),4)}, v{vAX+4+t} offset:{SLOT}"
    def rw(p, t): return [f"ds_read_b64_tr_b16 {vr(LW(p,t)+2*q,2)}, v{vAW+1} offset:{SLOT+t*3072+q*768+p*64}" for q in range(2)]
    def m(p, t): return f"v_mfma_f32_32x32x16_bf16 {vr(acc+16*p,16)}, {vr(LW(p,t),4)}, {vr(LX(t),4)}, {vr(acc+16*p,16)}"
    for t in range(4):
        a(rx(t))
        for x in rw(0, t): a(x)
    a("s_waitcnt lgkmcnt(9)"); a(m(0, 0))
    for x in rw(1, 0) + rw(1, 1): a(x)
    a("s_waitcnt lgkmcnt(10)"); a(m(0, 1))
    for x in rw(1, 2) + rw(1, 3): a(x)
    a("s_waitcnt lgkmcnt(11)"); a(m(0, 2))
    for x in rw(2, 0) + rw(2, 1): a(x)
    a("s_waitcnt lgkmcnt(12)"); a(m(0, 3))
    for x in rw(2, 2): a(x)
    a("s_waitcnt lgkmcnt(12)"); a(m(1, 0))
    for x in rw(2, 3): a(x)
    a("s_waitcnt lgkmcnt(8)"); a(m(1, 1))
    stamp(4); xst(9); gst(1); gst(9, True)
    a("s_cmp_eq_u32 s24, 15")
    a("s_cbranch_scc1 L_NOFLAG")
    a("s_nop 1")
    rest = [m(1, 2), m(1, 3), "W0", m(2, 0), m(2, 1), m(2, 2), m(2, 3)]
    cost = 0; nxt = 24
    for ins in gelu8_sc(acc, T, O[0], 48, vC0):
        a(ins)
        cost += 8 if ("exp" in ins or "rcp" in ins) else 4
        if cost >= nxt and rest:
            x = rest.pop(0)
            if x == "W0":
                a("s_waitcnt lgkmcnt(0)"); x = rest.pop(0)
            a(x); nxt = cost + 24
    assert not rest
    hstore(0)
    for ins in gelu8_pk(acc + 8, T, O[1], 48, vC0): a(ins)
    hstore(1)
    a("s_waitcnt vmcnt(0)" if late_st else "s_waitcnt vmcnt(2)")
    a.label("L_PN")
    a(f"v_readlane_b32 s31, v{vN}, s59")
    a("s_add_u32 s67, s67, 1")
    a("s_nop 1")
    a("s_cmp_eq_u32 s31, 0")
    a("s_cbranch_scc1 L_PN_RETRY")
    a.label("L_PN_OK")
    stubs.label("L_PN_RETRY")
    stubs(f"s_cmp_gt_u32 s67, {LIM}")
    stubs("s_cbranch_scc1 L_PN_OK")
    stubs("s_sleep 16")
    stubs(f"buffer_load_dword v{vN}, v{vNA}, s[44:47], 0 offen sc1")
    stubs("s_waitcnt vmcnt(0)")
    stubs("s_branch L_PN")
    a(f"v_mov_b32 v{vFV}, s31")
    a(f"v_add_u32 v{vFV+1}, 1, v{vFV}")
    a(f"v_add_u32 v{vFV+2}, 2, v{vFV}")
    a("s_cmp_eq_u32 s24, 14")
    a("s_cbranch_scc1 L_ST14")
    stubs.label("L_ST14")
    stubs("s_barrier")
    stubs("s_branch L_LASTF")
    for idx in range(2, 6):
        for ins in gelu8_pk(acc + 8*idx, T, O[idx], 48, vC0): a(ins)
        hstore(idx)
        if idx == bs_at: a("s_barrier")
        if staged and idx == f1at:
            a(f"s_waitcnt vmcnt({vm.need('st1')})")
            flag(1)
    stamp(5); xst(10)
    if staged:
        a(f"s_waitcnt vmcnt({vm.need('st3')})")
        flag(2)
    a.label("L_LASTF")
    stage0()
    poll_issue(0)
    acc2_zero(); acc2_bias()
    a(f"s_waitcnt vmcnt(1)")
    stamp(6); xst(11); gst(11)
    flag(3)
    a("s_branch L_C2")
    a.label("L_NOFLAG")
    a("s_waitcnt vmcnt(0) lgkmcnt(0)")
    a("s_barrier")
    stage0()
    poll_issue(0)
    acc2_zero(); acc2_bias()
    a("s_waitcnt vmcnt(0)")
    a.label("L_C2")
    poll_issue(1)
    a("s_waitcnt vmcnt(2) lgkmcnt(0)")
    a("s_barrier")

    a.label("L_PHASE2")
    stamp(7)
    a("s_mov_b32 s67, 0")
    a.label("L_CN")
    a(f"v_readlane_b32 s62, v{vN}, s25")
    a("s_add_u32 s67, s67, 1")
    a("s_nop 1")
    a("s_cmp_eq_u32 s62, 0")
    a("s_cbranch_scc1 L_CN_RETRY")
    a.label("L_CN_OK")
    stubs.label("L_CN_RETRY")
    stubs(f"s_cmp_gt_u32 s67, {LIM}")
    stubs("s_cbranch_scc1 L_CN_OK")
    stubs("s_sleep 16")
    stubs(f"buffer_load_dword v{vN}, v{vNA}, s[44:47], 0 offen sc1")
    stubs("s_waitcnt vmcnt(0)")
    stubs("s_branch L_CN")
    a("s_sub_u32 s62, s62, 1")
    chk(0, 0)
    a("s_cbranch_scc1 L_GO")
    a.label("L_POLL")
    a(f"s_waitcnt vmcnt(0)")
    chk(1, 0)
    a("s_cbranch_scc1 L_GO")
    a("s_add_u32 s67, s67, 1")
    if psleep: a(f"s_sleep {psleep}")
    poll_issue(1)
    a(f"s_cmp_le_u32 s67, {LIM}")
    a("s_cbranch_scc1 L_POLL")
    a.label("L_GO")
    stamp(8)
    vm = Cnt(); lg = Cnt()
    def hload(s):
        if s % 2 == 0: goff(s >> 1, 11, "s66")
        a(f"buffer_load_dwordx4 {vr(fh[s],4)}, v{vOH2}, s[36:39], s66 offen offset:{(s&1)*256} sc1")
        vm.issue(f"h{s}")
    if prio2 is not None:
        a("s_cmp_lt_u32 s7, 4")
        a("s_cbranch_scc1 L_NOPRIO")
        a(f"s_setprio {prio2}")
        a.label("L_NOPRIO")
    for s in range(PF): hload(s)
    D = 2 if deep else 1
    if deep:
        for x in wrd(1): a(x)
        lg.issue("w1", 8)
    for s in range(22):
        pos = s >> 1; mi = s & 1
        if mi == 0 and pos + D == max(early, 6):
            a("s_waitcnt lgkmcnt(0)")
            a("s_barrier")
        if mi == 0 and pos + D == early and early < 6:
            a("s_barrier")
        w = f"s_waitcnt vmcnt({vm.need(f'h{s}')})"
        if mi == 0 and pos >= 1: w += f" lgkmcnt({lg.need(f'w{pos}')})"
        a(w)
        if s == 0: stamp(9)
        if s == 21: stamp(10)
        W = WS(pos)
        r = wrd(pos + D) if pos + D <= 10 else []
        r = (r[:rsplit] if mi == 0 else r[rsplit:])
        per_ = (len(r) + 3) // 4
        for o in range(4):
            ac = vr(acc2 + 8*o + 4*mi, 4)
            a(f"v_mfma_f32_16x16x32_bf16 {ac}, {vr(W+4*o,4)}, {vr(fh[s],4)}, {ac}")
            for x in r[per_*o:per_*o+per_]:
                a(x); lg.issue(f"w{pos+D}")
        if s + PF < 22: hload(s + PF)
    stamp(11)
    a("s_nop 6")
    for o in range(1, 4):
        if o == 2: a("s_nop 1")
        for e in range(2):
            a(f"ds_write_b128 v{vRW+o-1}, {vr(acc2+8*o+4*e,4)} offset:{(o-1)*2048+e*1024}")
    a("s_waitcnt lgkmcnt(0)")
    a("s_barrier")
    stamp(12)
    rdm = fh[0]
    for o in range(3):
        for e in range(2):
            a(f"ds_read_b128 {vr(rdm+8*o+4*e,4)}, v{vRR} offset:{o*2048+e*1024}")
    for o in range(3):
        a(f"s_waitcnt lgkmcnt({4-2*o})")
        for i in range(0, 8, 2):
            a(f"v_pk_add_f32 {vr(acc2+i,2)}, {vr(acc2+i,2)}, {vr(rdm+8*o+i,2)}")
    od = fw2[0]
    for i in range(4):
        a(f"v_cvt_pk_bf16_f32 v{od+i}, v{acc2+2*i}, v{acc2+2*i+1}")
    a("s_nop 1")
    a(f"v_permlane16_swap_b32 v{od}, v{od+2}")
    a(f"v_permlane16_swap_b32 v{od+1}, v{od+3}")
    a(f"buffer_store_dwordx4 {vr(od,4)}, v{vOO}, s[52:55], 0 offen")
    if prof:
        stamp(13)
        a("s_waitcnt vmcnt(0)")
        stamp(14)
        a("s_waitcnt lgkmcnt(0)")
        if prof != 2:
            a(f"s_mov_b32 s{SB+30}, s67")
            a(f"s_mov_b32 s{SB+31}, 0")
        a(f"s_add_u32 s44, s22, {128<<20}")
        a(f"s_addc_u32 s45, s23, 0")
        a("s_mov_b32 s46, 0x1000000")
        a("s_mov_b32 s47, 0x20000")
        a("s_lshl_b32 s48, s2, 3")
        a("s_add_u32 s48, s48, s7")
        a(f"s_mul_i32 s48, s48, {NST*8}")
        a("v_mov_b32 v1, 0")
        for i in range(NST):
            a(f"v_mov_b32 v2, s{SB+2*i}")
            a(f"v_mov_b32 v3, s{SB+2*i+1}")
            a(f"buffer_store_dwordx2 v[2:3], v1, s[44:47], s48 offen offset:{8*i}")
            a("s_nop 1")
    a.label("L_END")
    a("s_endpgm")
    return a.text() + stubs.text(), nv

def build(out, **kw):
    k, nv = gen(**kw)
    s = HEADER + "; @launch grid=(256,1,1) block=(512,1,1) lds=163840\n"
    s += '.amdgcn_target "amdgcn-amd-amdhsa--gfx950"\n.text\n'
    s += kernel_start(NAME) + k
    s += '.section .rodata,"a"\n' + kernel_desc(NAME, nv, 102)
    open(out, "w").write(s)
    print(out, "vgprs", nv)

if __name__ == "__main__":
    build("v22.s"); build("v22_tr1.s", trot=1); build("v22_z16.s", npz=16); build("v22_z32.s", npz=32); build("v22_l3.s", lsp=(1,2,3)); build("v22_l6.s", lsp=(0,1,2,3,4,5)); build("v22_la9.s", LA=9); build("v22_la13.s", LA=13)
```

```python
import sys
from asmlib import *
from spinlib import spin_kernel
import gen_v22 as G
NAME = G.NAME
def main(out, prof, idx, mx, **kw):
    k, nv = G.gen(prof=prof, **kw)
    outs = [(0, i, True) for i in range(15)]
    s = HEADER
    s += f"; @launch kernel={NAME} grid=(256,1,1) block=(512,1,1) lds=163840\n"
    s += "; @launch kernel=spin_kernel grid=(1,1,1) block=(64,1,1) lds=512\n"
    s += '.amdgcn_target "amdgcn-amd-amdhsa--gfx950"\n.text\n'
    s += kernel_start(NAME) + k
    s += kernel_start("spin_kernel") + spin_kernel(1, 16, 0, idx, mx, outs, nwaves=2048)
    s += '.section .rodata,"a"\n' + kernel_desc(NAME, nv, 102) + kernel_desc("spin_kernel", 96, 32)
    open(out, "w").write(s)
main("c4_s0.s", 3, 0, False); main("c4_mf1.s", 3, 9, True); main("c4_stored.s", 3, 10, True); main("c4_acked.s", 3, 11, True); main("c4_go.s", 1, 8, True); main("c4_end.s", 1, 14, True)
main("c4_storedmin.s", 3, 10, False); main("c4_h0.s", 1, 9, True); main("c4_h21.s", 1, 10, True); main("c4_b0.s", 1, 2, True); main("c4_lbs.s", 3, 12, True); main("c4_ph2.s", 1, 7, True)
```

```python
import sys, math
from asmlib import *
from gen_v3 import gelu8_pk, gelu8_sc

MB_BYTES = 86 * 1024
MBS = 88 * 1024
H_BYTES = 64 * MBS
C0 = -2.0 * math.sqrt(2.0 / math.pi) * math.log2(math.e)
C1 = C0 * 0.044715
NAME = "standalone__dense_activation_gelu__prompt_kernel"
SLOT = 28672
DBASE = 4 * SLOT
NST = 16
LIM = 0x100000

def w2_lds(pos):
    if pos == 10: pos = 0
    if pos < 3:
        return DBASE + pos * 16384
    return (pos - 3) * 16384

def grp(pos, kq):
    i = 4 * pos + kq
    p = (i >= 15) + (i >= 29)
    ft = i - (0, 15, 29)[p]
    return ft, p, 3 * ft + p
STG = [0]*3 + [1]*4 + [2]*4
def mask(kq, st):
    m = 0
    for pos in range(11):
        ft, p, g = grp(pos, kq)
        if STG[pos] == st and g < 43: m |= 1 << ft
    return m

class Cnt:
    def __init__(self): self.q = []
    def issue(self, tag, n=1): self.q += [tag] * n
    def need(self, tag):
        idx = max(i for i, t in enumerate(self.q) if t == tag)
        return len(self.q) - 1 - idx

def gen(prof=0, PF=8, psleep=2, lsp=(1,2,3,4), staged=False, f1at=4, cpf=False, p2at=9, LA=11, pre1=11, bat=0, early=5, ldel=0, late_st=False, rsplit=4, deep=True, prio2=None, bs_at=5, trot=0, npz=0, tthr=None, npoll=1, pgap=4, nfd=0, d14=0, rot='r2', lmall=True):
    a = Asm(); stubs = Asm()
    SB = 70
    def stamp(i):
        if prof == 1 or (prof >= 3 and i == 0):
            a(f"s_memrealtime s[{SB+2*i}:{SB+2*i+1}]")
    def fstamp(i):
        if prof == 2:
            a(f"s_memrealtime s[{SB+2*i}:{SB+2*i+1}]")
    def gst(i, cyc=False):
        if prof == 4:
            a(f"{'s_memtime' if cyc else 's_memrealtime'} s[{SB+2*i}:{SB+2*i+1}]")
    def xst(i):
        if prof == 3:
            a(f"s_memrealtime s[{SB+2*i}:{SB+2*i+1}]")
    a("s_load_dwordx16 s[8:23], s[0:1], 0")
    stamp(0)
    if prof == 3:
        for i in range(2, 32): a(f"s_mov_b32 s{SB+i}, 0")
    a("s_cmp_ge_u32 s2, 256")
    a("s_cbranch_scc1 L_END")
    a("""v_lshrrev_b32 v2, 6, v0
    v_and_b32 v1, 63, v0
    s_and_b32 s3, s2, 7
    v_readfirstlane_b32 s7, v2
    s_bfe_u32 s4, s2, 0x30003
    s_lshr_b32 s5, s2, 6
    s_and_b32 s6, s3, 3
    s_lshl_b32 s30, s5, 2
    s_add_u32 s6, s6, s30
    s_lshr_b32 s24, s3, 2
    s_lshl_b32 s24, s24, 3
    s_add_u32 s24, s24, s4
    s_and_b32 s28, s7, 3
    v_and_b32 v2, 3, v2
    s_cmp_lt_u32 s7, 4
    s_cbranch_scc1 L_C""")
    vLane = 1; vQ = 2
    R = RegAlloc(3)
    t0 = R.alloc(); t1 = R.alloc(); t2 = R.alloc()
    vAW2 = R.alloc(12); vOH = R.alloc(); vOH2 = R.alloc(); vRW = R.alloc(3); vRR = R.alloc(); vOO = R.alloc(); vN = R.alloc(); vNA = R.alloc(); vFA = R.alloc()
    vF = R.alloc(4); vD = R.alloc()
    vb2 = R.alloc(4, 2)
    base = R.n
    R1 = RegAlloc(base)
    vAX = R1.alloc(8); vAW = R1.alloc(2); vFS = R1.alloc(); vFV = R1.alloc(3); vC0 = R1.alloc(2, 2)
    acc = R1.alloc(48, 4)
    fx = [R1.alloc(4, 4) for _ in range(3)]
    fw = [R1.alloc(12, 4) for _ in range(3)]
    T = R1.alloc(8, 4); O = [R1.alloc(4, 4) for _ in range(6)]
    RL = RegAlloc(base)
    vOX = RL.alloc(4); vOW = RL.alloc(3); vOW2 = RL.alloc(4)
    assert RL.n <= acc
    R2 = RegAlloc(R1.n)
    acc2 = R2.alloc(32, 4)
    fw2 = [R2.alloc(8, 4) for _ in range(2)]
    st0 = R2.alloc(16, 4)
    lastbuf = acc2
    R2b = RegAlloc(acc)
    fh = [R2b.alloc(4, 4) for _ in range(22)]
    assert R2b.n <= T
    nv = R2.n

    def common_setup():
        a("""s_add_u32 s30, s3, 1
        s_and_b32 s30, s30, 3
        s_lshl_b32 s30, s30, 1
        s_lshl_b32 s25, s5, 3
        s_add_u32 s25, s25, s30
        s_lshr_b32 s30, s3, 2
        s_add_u32 s25, s25, s30
        s_lshr_b32 s29, s7, 2
        s_lshl_b32 s26, s28, 12
        s_mul_i32 s27, s28, 11""")
        a(f"""v_lshrrev_b32 v{t0}, 5, v{vLane}
        v_lshlrev_b32 v{t0}, 4, v{t0}
        v_bfe_u32 v{t1}, v{vLane}, 2, 3
        v_add_u32 v{t0}, v{t0}, v{t1}
        v_lshlrev_b32 v{t0}, 7, v{t0}
        v_bfe_u32 v{t1}, v{vLane}, 3, 2
        v_xor_b32 v{t1}, v{t1}, v{vQ}
        v_lshl_add_u32 v{t0}, v{t1}, 5, v{t0}
        v_and_b32 v{t1}, 3, v{vLane}
        v_lshl_add_u32 v{t0}, v{t1}, 3, v{t0}
        v_lshl_add_u32 v{vAW2}, v{vQ}, 12, v{t0}
        v_xor_b32 v{vAW2+1}, 32, v{vAW2}
        v_xor_b32 v{vAW2+2}, 64, v{vAW2}
        v_xor_b32 v{vAW2+3}, 0x60, v{vAW2}
        v_add_u32 v{vAW2+4}, 65536, v{vAW2}
        v_add_u32 v{vAW2+5}, 65536, v{vAW2+1}
        v_add_u32 v{vAW2+6}, 65536, v{vAW2+2}
        v_add_u32 v{vAW2+7}, 65536, v{vAW2+3}
        v_add_u32 v{vAW2+8}, 131072, v{vAW2}
        v_add_u32 v{vAW2+9}, 131072, v{vAW2+1}
        v_add_u32 v{vAW2+10}, 131072, v{vAW2+2}
        v_add_u32 v{vAW2+11}, 131072, v{vAW2+3}
        v_lshrrev_b32 v{t0}, 4, v{vLane}
        v_lshlrev_b32 v{t0}, 9, v{t0}
        v_and_b32 v{t1}, 15, v{vLane}
        v_lshl_add_u32 v{vOH2}, v{t1}, 4, v{t0}
        v_lshlrev_b32 v{vOH}, 4, v{vLane}
        s_cmp_eq_u32 s29, 0
        s_cselect_b32 s30, {DBASE + 16384}, 0
        v_add_u32 v{t0}, s30, v{vOH}""")
        for o in range(1, 4):
            a(f"v_xor_b32 v{t1}, {o}, v{vQ}")
            a(f"v_mul_u32_u24 v{t1}, 6144, v{t1}")
            a(f"v_add_u32 v{vRW+o-1}, v{t1}, v{t0}")
        a(f"v_mul_u32_u24 v{t1}, 6144, v{vQ}")
        a(f"v_add_u32 v{vRR}, v{t1}, v{t0}")
        a(f"""v_and_b32 v{t0}, 31, v{vLane}
        v_lshlrev_b32 v{vNA}, 2, v{t0}
        v_lshrrev_b32 v{t1}, 5, v{vLane}
        v_lshlrev_b32 v{t1}, 4, v{t1}
        v_lshl_add_u32 v{vOO}, v{t0}, 10, v{t1}
        v_and_b32 v{vFA}, 15, v{vLane}
        v_lshlrev_b32 v{vFA}, 2, v{vFA}
        s_lshl_b32 s30, s25, 1
        s_add_u32 s30, s30, s29
        s_mul_i32 s68, s30, {MBS}
        s_lshl_b32 s69, s4, 7
        s_lshl_b32 s31, s28, 5
        s_add_u32 s69, s69, s31
        s_lshl_b32 s67, s30, 15
        s_add_u32 s67, s67, s69""")
    def goff(pos, shift, dst):
        a(f"s_add_u32 {dst}, s27, {pos}")
        a(f"s_lshl_b32 {dst}, {dst}, {shift}")
    def common_srds():
        a(f"""s_mov_b32 s40, s22
        s_mov_b32 s41, s23
        s_mov_b32 s42, {H_BYTES}
        s_mov_b32 s43, 0x20000
        s_mov_b32 s44, s20
        s_mov_b32 s45, s21
        s_mov_b32 s46, 256
        s_mov_b32 s47, 0x20000
        s_add_u32 s52, s18, s67
        s_addc_u32 s53, s19, 0
        s_sub_u32 s54, 2097152, s67
        s_mov_b32 s55, 0x20000""")
    def b2_load():
        a("""s_mov_b32 s32, s16
        s_mov_b32 s33, s17
        s_mov_b32 s34, 1024
        s_mov_b32 s35, 0x20000""")
        a(f"v_lshrrev_b32 v{t1}, 4, v{vLane}")
        a(f"v_lshlrev_b32 v{t1}, 3, v{t1}")
        a(f"buffer_load_dwordx2 {vr(vb2,2)}, v{t1}, s[32:35], s69 offen")
    def WS(pos):
        return [st0, fw2[0], O[0]][pos % 3] if deep else (st0 if pos % 2 == 0 else fw2[0])
    def wrd(pos):
        off = w2_lds(pos); k = off >> 16; off -= k << 16
        W = WS(pos)
        return [f"ds_read_b64_tr_b16 {vr(W+4*o+2*q,2)}, v{vAW2+4*k+o} offset:{off+q*1024}" for o in range(4) for q in range(2)]
    def stage0():
        for x in wrd(0): a(x)
    def ph2_scalars():
        a(f"s_add_u32 s63, s68, {MB_BYTES}")
        a("s_add_u32 s36, s22, s68")
        a("s_addc_u32 s37, s23, 0")
        a(f"s_mov_b32 s38, {MB_BYTES}")
        a("s_mov_b32 s39, 0x20000")
        a("s_lshl_b32 s31, s28, 4")
        a("s_mov_b32 s60, 0x00f8000f")
        a("s_mov_b32 s61, 0x78000780")
        a("s_lshr_b64 s[60:61], s[60:61], s31")
        a(f"s_and_b32 s56, s60, 0xffff")
    def acc2_zero():
        for i in range(8, 32):
            a(f"v_mov_b32 v{acc2+i}, 0")
    def acc2_bias():
        for i in range(4):
            a(f"v_lshlrev_b32 v{acc2+2*i}, 16, v{vb2+(i&1)}")
            a(f"v_and_b32 v{acc2+2*i+1}, 0xffff0000, v{vb2+(i&1)}")
    def poll_issue(k, o=a):
        o(f"buffer_load_dword v{vF+k}, v{vFA}, s[40:43], s63 offen sc1")
    def chk(k, st, o=a):
        lvl = st + 1 if staged else 3
        o(f"v_subrev_u32 v{vD}, s62, v{vF+k}")
        o(f"v_subrev_u32 v{vD}, {lvl}, v{vD}")
        o(f"v_cmp_ge_u32 vcc, {3-lvl}, v{vD}")
        o("s_nop 1")
        o(f"s_and_b32 s31, vcc_lo, s{56+st}")
        o(f"s_cmp_eq_u32 s31, s{56+st}")

    a.c("loader waves")
    a({"r2": """s_add_u32 s62, s5, s4
    s_and_b32 s62, s62, 1
    s_lshl_b32 s62, s62, 2
    s_lshr_b32 s30, s3, 2
    s_add_u32 s30, s30, s3
    s_and_b32 s30, s30, 1
    s_lshl_b32 s30, s30, 1
    s_add_u32 s62, s62, s30""",
       "none": "s_mov_b32 s62, 4",
       "xcd": "s_mov_b32 s62, s3",
       "cu": "s_lshl_b32 s62, s5, 1\ns_add_u32 s62, s62, s4\ns_and_b32 s62, s62, 7",
       "r2b": "s_add_u32 s62, s5, s4\ns_and_b32 s62, s62, 1\ns_lshl_b32 s62, s62, 2\ns_add_u32 s62, s62, s3\ns_and_b32 s62, s62, 7",
       "r4": "s_add_u32 s62, s5, s4\ns_and_b32 s62, s62, 3\ns_lshl_b32 s62, s62, 1",
       "r1": "s_add_u32 s62, s5, s4\ns_and_b32 s62, s62, 1\ns_add_u32 s62, s62, 4",
       }[rot])
    a(f"""v_lshrrev_b32 v{t0}, 3, v{vLane}
    v_lshl_add_u32 v{t0}, v{vQ}, 5, v{t0}
    v_lshlrev_b32 v{t0}, 10, v{t0}
    v_lshrrev_b32 v{t1}, 4, v{vLane}
    v_and_b32 v{t2}, 7, v{vLane}
    v_xor_b32 v{t1}, v{t1}, v{t2}
    v_lshl_add_u32 v{vOX}, v{t1}, 4, v{t0}
    v_xor_b32 v{t1}, 4, v{t1}
    v_lshl_add_u32 v{vOX+1}, v{t1}, 4, v{t0}
    v_add_u32 v{vOX+1}, {8192-1024}, v{vOX+1}
    v_add_u32 v{vOX+2}, {2*(8192-1024)}, v{vOX}
    v_add_u32 v{vOX+3}, {2*(8192-1024)}, v{vOX+1}
    v_mul_u32_u24 v{t0}, 192, v{vQ}
    v_add_u32 v{t0}, v{t0}, v{vLane}""")
    for j in range(3):
        if j:
            a(f"v_add_u32 v{t0}, 64, v{t0}")
        a(f"v_mul_u32_u24 v{t1}, 43691, v{t0}")
        a(f"v_lshrrev_b32 v{t1}, 19, v{t1}")
        a(f"v_mul_u32_u24 v{t2}, 12, v{t1}")
        a(f"v_sub_u32 v{t2}, v{t0}, v{t2}")
        a(f"v_mul_u32_u24 v{t1}, 2752, v{t1}")
        a(f"v_lshl_add_u32 v{vOW+j}, v{t2}, 4, v{t1}")
        if j:
            a(f"v_subrev_u32 v{vOW+j}, {1024*j}, v{vOW+j}")
    a("""s_lshl_b32 s56, s28, 12
    s_mul_i32 s57, s28, 3072
    s_add_u32 s57, s57, 16384
    s_mul_i32 s58, s24, 192
    s_lshl_b32 s59, s6, 17
    s_sub_u32 s38, 1409024, s58
    s_cmp_eq_u32 s24, 15
    s_cselect_b32 s38, 0, s38
    s_cselect_b32 s34, 0, 131072
    s_mov_b32 s35, 0x20000
    s_mov_b32 s39, 0x20000
    s_waitcnt lgkmcnt(0)""")
    stamp(1); xst(1)
    a("""s_add_u32 s32, s8, s59
    s_addc_u32 s33, s9, 0
    s_add_u32 s36, s10, s58
    s_addc_u32 s37, s11, 0""")
    items = []
    for c in range(8):
        slot = c % 4
        for j in range(7):
            l = []
            if j == 0:
                l += [f"s_add_u32 m0, s56, {slot*SLOT}", "s_lshl_b32 s63, s62, 7"]
            if j == 4:
                l += [f"s_add_u32 m0, s57, {slot*SLOT}", "s_mul_i32 s63, s62, 176128", "s_add_u32 s62, s62, 1", "s_and_b32 s62, s62, 7"]
            if j < 4: l.append(f"buffer_load_dwordx4 v{vOX+j}, s[32:35], s63 offen offset:{1024*j} lds")
            else: l.append(f"buffer_load_dwordx4 v{vOW+j-4}, s[36:39], s63 offen offset:{1024*(j-4)} lds")
            items.append((l, f"c{c}", c - 3))
    W2B = {0: -9, 1: -9, 2: -9, 3: 5, 4: 6, 5: 6, 6: 7, 7: 7}
    for pos in range(early):
        for j in range(4):
            items.append((("W2", pos, j), f"p{pos}", W2B[pos]))
    vmL = Cnt(); ptr = [0]
    def emit(n, bar):
        while ptr[0] < min(n, len(items)) and items[ptr[0]][2] <= bar:
            l, tag, _ = items[ptr[0]]
            if l[0] == "W2":
                _, pos, j = l
                if j == 0:
                    a(f"s_add_u32 m0, s26, {w2_lds(pos)}")
                    goff(pos, 15, "s66")
                a(f"buffer_load_dwordx4 v{vOW2+j}, s[48:51], s66 offen offset:{1024*j} lds")
            else:
                for x in l: a(x)
            vmL.issue(tag); ptr[0] += 1
    def dma2(pos):
        a(f"s_add_u32 m0, s26, {w2_lds(pos)}")
        goff(pos, 15, "s66")
        for j in range(4):
            a(f"buffer_load_dwordx4 v{vOW2+j}, s[48:51], s66 offen offset:{1024*j} lds")
    emit(pre1, -1); xst(2)
    common_setup()
    common_srds()
    a(f"""v_lshrrev_b32 v{t0}, 3, v{vLane}
    v_bfe_u32 v{t1}, v{vLane}, 4, 2
    v_lshlrev_b32 v{t1}, 1, v{t1}
    v_and_b32 v{t2}, 7, v{vLane}
    v_xor_b32 v{t1}, v{t1}, v{t2}
    v_lshlrev_b32 v{t0}, 10, v{t0}
    v_lshl_add_u32 v{vOW2}, v{t1}, 4, v{t0}""")
    for j in range(1, 4):
        a(f"v_add_u32 v{vOW2+j}, {j*(8192-1024)}, v{vOW2}")
    a("""s_lshl_b32 s30, s4, 7
    s_add_u32 s48, s14, s30
    s_addc_u32 s49, s15, 0
    s_sub_u32 s50, 1409024, s30
    s_mov_b32 s51, 0x20000""")
    if lsp:
        a("""s_lshl_b32 s30, s2, 2
        s_add_u32 s30, s30, s28
        s_mul_i32 s30, s30, 1376
        s_and_b32 s30, s30, 0xffffffc0
        s_add_u32 s58, s14, s30
        s_addc_u32 s59, s15, 0
        s_lshr_b32 s30, s2, 3
        s_mul_i32 s30, s30, 43
        s_mul_i32 s31, s28, 11
        s_add_u32 s30, s30, s31
        s_min_u32 s30, s30, 1365
        s_lshl_b32 s30, s30, 10
        s_add_u32 s60, s14, s30
        s_addc_u32 s61, s15, 0""")
        lds_ = []
        for i in range(22):
            lds_.append(f"s_load_dword s31, s[60:61], {(i//2)*1024+384+(i&1)*64}")
            if lmall: lds_.append(f"s_load_dword s31, s[58:59], {min(i*64, 1372)}")
        per = (len(lds_) + len(lsp) - 1) // len(lsp)
    xst(3)
    for i in range(8):
        la = LA[i] if isinstance(LA, (list, tuple)) else LA
        emit(7 * (i + 1) + la, i - 1)
        fstamp(2*i)
        a(f"s_waitcnt vmcnt({vmL.need(f'c{i}')})")
        fstamp(2*i+1)
        if i == 0: xst(4)
        a("s_barrier")
        if i == 0: stamp(2)
        if i == 7: stamp(3)
        if lsp and i in lsp:
            for x in lds_[lsp.index(i)*per:(lsp.index(i)+1)*per]: a(x)
    emit(999, 7)
    b2_load()
    stamp(4)
    a("s_waitcnt lgkmcnt(0)")
    if npz:
        a(f"s_add_u32 s30, s27, {early}")
        a("s_lshl_b32 s30, s30, 5")
        a("s_lshr_b32 s31, s2, 3")
        a(f"s_mul_i32 s31, s31, {(npz+15)//16}")
        a("s_add_u32 s30, s30, s31")
        a("s_min_u32 s30, s30, 1368")
        a("s_lshl_b32 s30, s30, 10")
        a("s_add_u32 s64, s14, s30")
        a("s_addc_u32 s65, s15, 0")
    a(f"buffer_load_dword v{vN}, v{vNA}, s[44:47], 0 offen sc1")
    ph2_scalars()
    for i in range(npz): a(f"s_load_dword s59, s[64:65], {i*64}")
    acc2_zero()
    a("s_waitcnt vmcnt(0)")
    acc2_bias()
    stage0()
    stamp(5); xst(12)
    a("s_barrier")
    stamp(6)
    if ldel: a(f"s_sleep {ldel}")
    if trot:
        n = 10 - early
        a(f"s_mul_i32 s64, s5, {trot}")
        for k in range(n):
            a(f"s_cmp_ge_u32 s64, {n}")
            a(f"s_cselect_b32 s65, {n}, 0")
            a("s_sub_u32 s64, s64, s65")
            a("s_lshl_b32 s65, s64, 14")
            a("s_add_u32 s65, s65, s26")
            a(f"s_add_u32 m0, s65, {w2_lds(early)}")
            a("s_add_u32 s66, s64, s27")
            a(f"s_add_u32 s66, s66, {early}")
            a("s_lshl_b32 s66, s66, 15")
            for j in range(4):
                a(f"buffer_load_dwordx4 v{vOW2+j}, s[48:51], s66 offen offset:{1024*j} lds")
            a("s_add_u32 s64, s64, 1")
    else:
        for pos in range(early, 10):
            if tthr is not None and pos > early: a(f"s_waitcnt vmcnt({tthr})")
            dma2(pos)
    poll_issue(0)
    a("s_waitcnt lgkmcnt(0)")
    a("s_barrier")
    dma2(10)
    poll_issue(1)
    a("s_waitcnt vmcnt(5)")
    a("s_branch L_PHASE2")

    a.label("L_NOFLAG")
    a("s_waitcnt vmcnt(0) lgkmcnt(0)")
    a("s_barrier")
    stage0()
    acc2_zero(); acc2_bias()
    a("s_branch L_C2")
    a.raw("STUBS_HERE")
    a.label("L_PAD")
    a.raw("PAD_HERE")
    a.label("L_C")
    xst(5)
    common_setup()
    a(f"""v_and_b32 v{t0}, 31, v{vLane}
    v_lshrrev_b32 v{t1}, 1, v{t0}
    v_and_b32 v{t1}, 7, v{t1}
    v_lshrrev_b32 v{t2}, 5, v{vLane}
    v_xor_b32 v{t1}, v{t1}, v{t2}
    v_lshlrev_b32 v{t0}, 7, v{t0}
    v_lshl_add_u32 v{t0}, v{vQ}, 12, v{t0}""")
    for t in range(4):
        a(f"v_xor_b32 v{vAX+t}, {2*t}, v{t1}")
        a(f"v_lshl_add_u32 v{vAX+t}, v{vAX+t}, 4, v{t0}")
        a(f"v_add_u32 v{vAX+4+t}, {2*SLOT}, v{vAX+t}")
    bA = acc2; bB = acc2 + 4
    for i in range(12): a(f"v_mov_b32 v{bB+i}, 0")
    a(f"""v_mov_b32 v{bA+2}, 0
    v_mov_b32 v{bA+3}, 0
    v_mul_u32_u24 v{bB+4}, 0x3f80, v{t2}
    v_xor_b32 v{bB}, 0x3f80, v{bB+4}
    v_mov_b32 v{bB+9}, v{bB}
    v_lshlrev_b32 v{t1}, 3, v{t2}
    v_bfe_u32 v{t0}, v{vLane}, 2, 2
    v_add_u32 v{t0}, v{t0}, v{t1}
    v_mul_u32_u24 v{t0}, 192, v{t0}
    v_bfe_u32 v{t1}, v{vLane}, 4, 1
    v_lshl_add_u32 v{t0}, v{t1}, 5, v{t0}
    v_and_b32 v{t1}, 3, v{vLane}
    v_lshl_add_u32 v{t0}, v{t1}, 3, v{t0}
    v_add_u32 v{vAW}, 16384, v{t0}
    v_add_u32 v{vAW+1}, {2*SLOT+16384}, v{t0}
    v_mov_b32 v{vC0}, 0x{f32bits(C0):08x}
    v_mov_b32 v{vC0+1}, 0x{f32bits(C0):08x}
    s_mov_b32 s48, 0x{f32bits(C1):08x}
    s_mov_b32 s49, 0x{f32bits(C1):08x}
    v_bfe_u32 v{t0}, v{vLane}, 4, 1
    v_mul_u32_u24 v{t0}, {MBS}, v{t0}
    v_add_u32 v{t0}, v{t0}, v{vFA}
    v_lshlrev_b32 v{t2}, 1, v{vLane}
    v_lshlrev_b32 v{vFS}, 24, v{vLane}
    s_mul_i32 s58, s24, 192
    s_lshl_b32 s59, s6, 2
    s_add_u32 s59, s59, s7
    s_mul_i32 s62, s59, {MBS}
    s_mul_i32 s61, s24, 6144
    s_add_u32 s50, s62, s61
    s_add_u32 s51, s50, 4096
    s_lshl_b32 s63, s24, 2
    s_add_u32 s62, s62, s63
    s_add_u32 s66, s62, {MB_BYTES}
    s_mul_i32 s63, s25, {2*MBS}
    s_add_u32 s63, s63, {MB_BYTES}
    s_lshr_b32 s59, s59, 1
    s_waitcnt lgkmcnt(0)""")
    stamp(1); xst(6)
    a(f"""s_mov_b32 s32, s12
    s_mov_b32 s33, s13
    s_mov_b32 s34, 2752
    s_mov_b32 s35, 0x20000
    buffer_load_ushort v{bA}, v{t2}, s[32:35], s58 offen
    buffer_load_ushort v{bA+1}, v{t2}, s[32:35], s58 offen offset:128""")
    common_srds()
    a(f"""s_or_b32 s61, s4, s7
    s_cmp_lg_u32 s61, 0
    s_cbranch_scc1 L_NOLEAD
    buffer_load_dword v{vF}, v{t0}, s[40:43], s63 offen sc1
    v_bfe_u32 v{t1}, v{vLane}, 4, 1
    v_sub_u32 v{t1}, v{vLane}, v{t1}
    v_add_u32 v{t1}, 2, v{t1}
    s_nop 0""")
    a.label("L_NOLEAD")
    xst(7)
    def lead2():
        a(f"""s_or_b32 s61, s4, s7
        s_cmp_lg_u32 s61, 0
        s_cbranch_scc1 L_NOLEAD2
        v_bfe_u32 v{t1}, v{vLane}, 4, 1
        v_sub_u32 v{t1}, v{vLane}, v{t1}
        v_add_u32 v{t1}, 2, v{t1}
        v_lshrrev_b32 v{t1}, v{t1}, v{vF}
        v_and_b32 v{t1}, 1, v{t1}
        v_cmp_eq_u32 vcc, 0, v{t1}
        s_lshl_b32 s30, s25, 2
        s_nop 0
        s_and_b32 s31, vcc_lo, 0x7fff
        s_lshl_b32 s31, s31, 2
        s_and_b32 s61, vcc_lo, 0x7fff0000
        s_lshl_b32 s61, s61, 1
        s_or_b32 s31, s31, s61
        s_or_b32 s31, s31, 1
        v_mov_b32 v{t1}, s31
        buffer_store_dword v{t1}, v{vFS}, s[44:47], s30 offen sc1""")
        a.label("L_NOLEAD2")
    ph2_scalars()
    a("s_mov_b32 s67, 0")
    def rd(c, t, s):
        slot = c % 4
        hi = slot >> 1; off = (slot & 1) * SLOT
        l = [f"ds_read_b128 {vr(fx[s],4)}, v{vAX+4*hi+t} offset:{off}"]
        for p in range(3):
            for q in range(2):
                l.append(f"ds_read_b64_tr_b16 {vr(fw[s]+4*p+2*q,2)}, v{vAW+hi} offset:{off+t*3072+q*768+p*64}")
        return l
    def mf(s, z=False):
        return [f"v_mfma_f32_32x32x16_bf16 {vr(acc+16*p,16)}, {vr(fw[s]+4*p,4)}, {vr(fx[s],4)}, {'0' if z else vr(acc+16*p,16)}" for p in range(3)]
    def inter(m, r):
        for x in [m[0], r[0], r[1], r[2], m[1], r[3], r[4], m[2], r[5], r[6]]:
            a(x)
    vm = Cnt()
    def hstore(idx):
        so = "s50" if idx < 4 else "s51"
        if idx == 5: gst(8)
        if late_st:
            if idx < 5:
                gst(2 + idx); return
            for k in range(5):
                a(f"buffer_store_dwordx4 {vr(O[k],4)}, v{vOH}, s[40:43], {'s50' if k < 4 else 's51'} offen offset:{(k%4)*1024} sc1")
        a(f"buffer_store_dwordx4 {vr(O[idx],4)}, v{vOH}, s[40:43], {so} offen offset:{(idx%4)*1024} sc1")
        vm.issue(f"st{idx}")
        gst(2 + idx)
        if idx == 5: gst(10, True)
    def flag(lvl):
        a(f"buffer_store_dword v{vFV+lvl-1}, v{vFS}, s[40:43], s66 offen sc1")
        vm.issue(f"f{lvl}")
    xst(8)
    for c in range(7):
        fstamp(2*c)
        a("s_barrier")
        fstamp(2*c+1)
        if c == 0: stamp(2)
        if c == 5:
            a(f"buffer_load_dword v{vN}, v{vNA}, s[44:47], 0 offen sc1")
            b2_load()
        for x in rd(c, 0, (4*c) % 3): a(x)
        if c >= 1:
            inter(mf((4*c - 1) % 3), rd(c, 1, (4*c+1) % 3))
        else:
            for x in rd(c, 1, (4*c+1) % 3): a(x)
        a("s_waitcnt lgkmcnt(7)")
        inter(mf((4*c) % 3, c == 0), rd(c, 2, (4*c+2) % 3))
        a("s_waitcnt lgkmcnt(7)")
        inter(mf((4*c+1) % 3), rd(c, 3, (4*c+3) % 3))
        a("s_waitcnt lgkmcnt(7)")
        for x in mf((4*c+2) % 3): a(x)
        if c == bat:
            a("s_waitcnt vmcnt(0)")
            for p in range(3):
                a(f"v_mfma_f32_32x32x16_bf16 {vr(acc+16*p,16)}, {vr(bA,4)}, {vr(bB+4*p,4)}, {vr(acc+16*p,16)}")
            lead2()
        a("s_waitcnt lgkmcnt(0)")
        if c == 6:
            for x in mf(27 % 3): a(x)
    fstamp(14)
    a("s_barrier")
    fstamp(15); gst(12); gst(13, True)
    stamp(3)
    LX = lambda t: lastbuf + 4*t
    LW = lambda p, t: lastbuf + 16 + 16*p + 4*t
    def rx(t): return f"ds_read_b128 {vr(LX(t),4)}, v{vAX+4+t} offset:{SLOT}"
    def rw(p, t): return [f"ds_read_b64_tr_b16 {vr(LW(p,t)+2*q,2)}, v{vAW+1} offset:{SLOT+t*3072+q*768+p*64}" for q in range(2)]
    def m(p, t): return f"v_mfma_f32_32x32x16_bf16 {vr(acc+16*p,16)}, {vr(LW(p,t),4)}, {vr(LX(t),4)}, {vr(acc+16*p,16)}"
    for t in range(4):
        a(rx(t))
        for x in rw(0, t): a(x)
    a("s_waitcnt lgkmcnt(9)"); a(m(0, 0))
    for x in rw(1, 0) + rw(1, 1): a(x)
    a("s_waitcnt lgkmcnt(10)"); a(m(0, 1))
    for x in rw(1, 2) + rw(1, 3): a(x)
    a("s_waitcnt lgkmcnt(11)"); a(m(0, 2))
    for x in rw(2, 0) + rw(2, 1): a(x)
    a("s_waitcnt lgkmcnt(12)"); a(m(0, 3))
    for x in rw(2, 2): a(x)
    a("s_waitcnt lgkmcnt(12)"); a(m(1, 0))
    for x in rw(2, 3): a(x)
    a("s_waitcnt lgkmcnt(8)"); a(m(1, 1))
    stamp(4); xst(9); gst(1); gst(9, True)
    a("s_cmp_eq_u32 s24, 15")
    a("s_cbranch_scc1 L_NOFLAG")
    a("s_nop 1")
    rest = [m(1, 2), m(1, 3), "W0", m(2, 0), m(2, 1), m(2, 2), m(2, 3)]
    cost = 0; nxt = 24
    for ins in gelu8_sc(acc, T, O[0], 48, vC0):
        a(ins)
        cost += 8 if ("exp" in ins or "rcp" in ins) else 4
        if cost >= nxt and rest:
            x = rest.pop(0)
            if x == "W0":
                a("s_waitcnt lgkmcnt(0)"); x = rest.pop(0)
            a(x); nxt = cost + 24
    assert not rest
    hstore(0)
    for ins in gelu8_pk(acc + 8, T, O[1], 48, vC0): a(ins)
    hstore(1)
    a("s_waitcnt vmcnt(0)" if late_st else "s_waitcnt vmcnt(2)")
    a.label("L_PN")
    a(f"v_readlane_b32 s31, v{vN}, s59")
    a("s_add_u32 s67, s67, 1")
    a("s_nop 1")
    a("s_cmp_eq_u32 s31, 0")
    a("s_cbranch_scc1 L_PN_RETRY")
    a.label("L_PN_OK")
    stubs.label("L_PN_RETRY")
    stubs(f"s_cmp_gt_u32 s67, {LIM}")
    stubs("s_cbranch_scc1 L_PN_OK")
    stubs("s_sleep 16")
    stubs(f"buffer_load_dword v{vN}, v{vNA}, s[44:47], 0 offen sc1")
    stubs("s_waitcnt vmcnt(0)")
    stubs("s_branch L_PN")
    a(f"v_mov_b32 v{vFV}, s31")
    a(f"v_add_u32 v{vFV+1}, 1, v{vFV}")
    a(f"v_add_u32 v{vFV+2}, 2, v{vFV}")
    a("s_cmp_eq_u32 s24, 14")
    a("s_cbranch_scc1 L_ST14")
    stubs.label("L_ST14")
    if d14: stubs(f"s_sleep {d14}")
    stubs("s_barrier")
    stubs("s_branch L_LASTF")
    for idx in range(2, 6):
        for ins in gelu8_pk(acc + 8*idx, T, O[idx], 48, vC0): a(ins)
        hstore(idx)
        if idx == bs_at: a("s_barrier")
        if staged and idx == f1at:
            a(f"s_waitcnt vmcnt({vm.need('st1')})")
            flag(1)
    stamp(5); xst(10)
    if staged:
        a(f"s_waitcnt vmcnt({vm.need('st3')})")
        flag(2)
    a.label("L_LASTF")
    stage0()
    acc2_zero(); acc2_bias()
    a(f"s_waitcnt vmcnt(0)")
    stamp(6); xst(11); gst(11)
    flag(3)
    a.label("L_C2")
    poll_issue(1)
    a(f"v_mov_b32 v{vF}, 0")
    a("s_waitcnt lgkmcnt(0)")
    a("s_barrier")

    a.label("L_PHASE2")
    stamp(7)
    a("s_mov_b32 s67, 0")
    a.label("L_CN")
    a(f"v_readlane_b32 s62, v{vN}, s25")
    a("s_add_u32 s67, s67, 1")
    a("s_nop 1")
    a("s_cmp_eq_u32 s62, 0")
    a("s_cbranch_scc1 L_CN_RETRY")
    a.label("L_CN_OK")
    stubs.label("L_CN_RETRY")
    stubs(f"s_cmp_gt_u32 s67, {LIM}")
    stubs("s_cbranch_scc1 L_CN_OK")
    stubs("s_sleep 16")
    stubs(f"buffer_load_dword v{vN}, v{vNA}, s[44:47], 0 offen sc1")
    stubs("s_waitcnt vmcnt(0)")
    stubs("s_branch L_CN")
    a("s_sub_u32 s62, s62, 1")
    chk(0, 0)
    a("s_cbranch_scc1 L_GO")
    if npoll == 1:
        a.label("L_POLL")
        a(f"s_waitcnt vmcnt(0)")
        chk(1, 0)
        a("s_cbranch_scc1 L_GO")
        a("s_add_u32 s67, s67, 1")
        if psleep: a(f"s_sleep {psleep}")
        poll_issue(1)
        a(f"s_cmp_le_u32 s67, {LIM}")
        a("s_cbranch_scc1 L_POLL")
    else:
        order = list(range(1, npoll + 1))
        for k in order[1:]:
            poll_issue(k)
            if k != order[-1]: a(f"s_sleep {pgap}")
        a.label("L_POLL")
        for k in order:
            a(f"s_waitcnt vmcnt({npoll-1})")
            chk(k, 0)
            a("s_cbranch_scc1 L_GO")
            if psleep: a(f"s_sleep {psleep}")
            poll_issue(k)
        a("s_add_u32 s67, s67, 1")
        a(f"s_cmp_le_u32 s67, {LIM}")
        a("s_cbranch_scc1 L_POLL")
    a.label("L_GO")
    stamp(8)
    vm = Cnt(); lg = Cnt()
    def hload(s):
        if s % 2 == 0: goff(s >> 1, 11, "s66")
        a(f"buffer_load_dwordx4 {vr(fh[s],4)}, v{vOH2}, s[36:39], s66 offen offset:{(s&1)*256} sc1")
        vm.issue(f"h{s}")
    if prio2 is not None:
        a("s_cmp_lt_u32 s7, 4")
        a("s_cbranch_scc1 L_NOPRIO")
        a(f"s_setprio {prio2}")
        a.label("L_NOPRIO")
    for s in range(PF): hload(s)
    D = 2 if deep else 1
    if deep:
        for x in wrd(1): a(x)
        lg.issue("w1", 8)
    for s in range(22):
        pos = s >> 1; mi = s & 1
        assert early == 5
        if mi == 0 and pos + D == early:
            a("s_waitcnt lgkmcnt(0)")
            a("s_barrier")
        w = f"s_waitcnt vmcnt({vm.need(f'h{s}')})"
        if mi == 0 and pos >= 1: w += f" lgkmcnt({lg.need(f'w{pos}')})"
        a(w)
        if s == 0: stamp(9)
        if s == 21: stamp(10)
        W = WS(pos)
        r = wrd(pos + D) if pos + D <= 10 else []
        r = (r[:rsplit] if mi == 0 else r[rsplit:])
        per_ = (len(r) + 3) // 4
        for o in range(4):
            ac = vr(acc2 + 8*o + 4*mi, 4)
            a(f"v_mfma_f32_16x16x32_bf16 {ac}, {vr(W+4*o,4)}, {vr(fh[s],4)}, {ac}")
            for x in r[per_*o:per_*o+per_]:
                a(x); lg.issue(f"w{pos+D}")
        if s + PF < 22: hload(s + PF)
    stamp(11)
    a("s_nop 6")
    for o in range(1, 4):
        if o == 2: a("s_nop 1")
        for e in range(2):
            a(f"ds_write_b128 v{vRW+o-1}, {vr(acc2+8*o+4*e,4)} offset:{(o-1)*2048+e*1024}")
    a("s_waitcnt lgkmcnt(0)")
    a("s_barrier")
    stamp(12)
    rdm = fh[0]
    for o in range(3):
        for e in range(2):
            a(f"ds_read_b128 {vr(rdm+8*o+4*e,4)}, v{vRR} offset:{o*2048+e*1024}")
    for o in range(3):
        a(f"s_waitcnt lgkmcnt({4-2*o})")
        for i in range(0, 8, 2):
            a(f"v_pk_add_f32 {vr(acc2+i,2)}, {vr(acc2+i,2)}, {vr(rdm+8*o+i,2)}")
    od = fw2[0]
    for i in range(4):
        a(f"v_cvt_pk_bf16_f32 v{od+i}, v{acc2+2*i}, v{acc2+2*i+1}")
    a("s_nop 1")
    a(f"v_permlane16_swap_b32 v{od}, v{od+2}")
    a(f"v_permlane16_swap_b32 v{od+1}, v{od+3}")
    a(f"buffer_store_dwordx4 {vr(od,4)}, v{vOO}, s[52:55], 0 offen")
    if prof:
        stamp(13)
        a("s_waitcnt vmcnt(0)")
        stamp(14)
        a("s_waitcnt lgkmcnt(0)")
        if prof != 2:
            a(f"s_mov_b32 s{SB+30}, s67")
            a(f"s_mov_b32 s{SB+31}, 0")
        a(f"s_add_u32 s44, s22, {128<<20}")
        a(f"s_addc_u32 s45, s23, 0")
        a("s_mov_b32 s46, 0x1000000")
        a("s_mov_b32 s47, 0x20000")
        a("s_lshl_b32 s48, s2, 3")
        a("s_add_u32 s48, s48, s7")
        a(f"s_mul_i32 s48, s48, {NST*8}")
        a("v_mov_b32 v1, 0")
        for i in range(NST):
            a(f"v_mov_b32 v2, s{SB+2*i}")
            a(f"v_mov_b32 v3, s{SB+2*i+1}")
            a(f"buffer_store_dwordx2 v[2:3], v1, s[44:47], s48 offen offset:{8*i}")
            a("s_nop 1")
    a.label("L_END")
    a("s_endpgm")
    return a.text().replace('STUBS_HERE\n', stubs.text()), nv

def assemble_labels(text):
    import subprocess, re
    open("lay.s", "w").write(text)
    subprocess.run(["clang", "-x", "assembler", "-target", "amdgcn-amd-amdhsa", "-mcpu=gfx950", "-c", "lay.s", "-o", "lay.o"], check=True)
    o = subprocess.run(["llvm-objdump", "-t", "lay.o"], capture_output=True, text=True).stdout
    return {m.group(2): int(m.group(1), 16) for m in re.finditer(r"^([0-9a-f]{16}) .*\.text\s+[0-9a-f]+ (?:\.\w+ )?(\S+)$", o, re.M)}

def build(out, align=True, shift=0, **kw):
    k, nv = gen(**kw)
    def full(pad):
        s = HEADER + "; @launch grid=(256,1,1) block=(512,1,1) lds=163840\n"
        s += '.amdgcn_target "amdgcn-amd-amdhsa--gfx950"\n.text\n'
        if align: s += ".p2align 12\n"
        s += kernel_start(NAME) + k.replace("PAD_HERE\n", f".fill {pad}, 4, 0xbf800000\n" if pad else "")
        s += '.section .rodata,"a"\n' + kernel_desc(NAME, nv, 102)
        return s
    pad = 0
    if align:
        L = assemble_labels(full(0))
        c2 = L["L_C2"] - L[NAME]
        pad = (((-c2) % 4096) + shift) // 4
        L = assemble_labels(full(pad))
        print({n: hex(L[n] - L[NAME]) for n in ("L_NOFLAG", "L_PAD", "L_C", "L_NOLEAD2", "L_PN", "L_C2", "L_GO", "L_END")})
    open(out, "w").write(full(pad))
    print(out, "vgprs", nv)

if __name__ == "__main__":
    build("v27.s"); build("v27p.s", prof=1); build("v27_na.s", align=False); build("v27_bad.s", shift=2048+512)
```

```python
import sys, math
from asmlib import *
from gen_v3 import gelu8_pk, gelu8_sc

MB_BYTES = 86 * 1024
MBS = 88 * 1024
H_BYTES = 64 * MBS
C0 = -2.0 * math.sqrt(2.0 / math.pi) * math.log2(math.e)
C1 = C0 * 0.044715
NAME = "standalone__dense_activation_gelu__prompt_kernel"
SLOT = 28672
DBASE = 4 * SLOT
NST = 16
LIM = 0x100000

def w2_lds(pos):
    if pos == 10: pos = 0
    if pos < 3:
        return DBASE + pos * 16384
    return (pos - 3) * 16384

def grp(pos, kq):
    i = 4 * pos + kq
    p = (i >= 15) + (i >= 29)
    ft = i - (0, 15, 29)[p]
    return ft, p, 3 * ft + p
STG = [0]*3 + [1]*4 + [2]*4
def mask(kq, st):
    m = 0
    for pos in range(11):
        ft, p, g = grp(pos, kq)
        if STG[pos] == st and g < 43: m |= 1 << ft
    return m

class Cnt:
    def __init__(self): self.q = []
    def issue(self, tag, n=1): self.q += [tag] * n
    def need(self, tag):
        idx = max(i for i, t in enumerate(self.q) if t == tag)
        return len(self.q) - 1 - idx

def gen(prof=0, PF=8, psleep=2, lsp=(1,2,3,4), staged=False, f1at=4, cpf=False, p2at=9, LA=11, pre1=11, bat=0, early=5, ldel=0, late_st=False, rsplit=4, deep=True, prio2=None, bs_at=5, trot=0, npz=0, tthr=None, npoll=1, pgap=4, nfd=0, d14=0, rot='r2', lmall=True):
    a = Asm(); stubs = Asm()
    SB = 70
    def stamp(i):
        if prof == 1 or (prof >= 3 and i == 0):
            a(f"s_memrealtime s[{SB+2*i}:{SB+2*i+1}]")
    def fstamp(i):
        if prof == 2:
            a(f"s_memrealtime s[{SB+2*i}:{SB+2*i+1}]")
    def gst(i, cyc=False):
        if prof == 4:
            a(f"{'s_memtime' if cyc else 's_memrealtime'} s[{SB+2*i}:{SB+2*i+1}]")
    def xst(i):
        if prof == 3:
            a(f"s_memrealtime s[{SB+2*i}:{SB+2*i+1}]")
    a("s_load_dwordx16 s[8:23], s[0:1], 0")
    stamp(0)
    if prof == 3:
        for i in range(2, 32): a(f"s_mov_b32 s{SB+i}, 0")
    a("s_cmp_ge_u32 s2, 256")
    a("s_cbranch_scc1 L_END")
    a("""v_lshrrev_b32 v2, 6, v0
    v_and_b32 v1, 63, v0
    s_and_b32 s3, s2, 7
    v_readfirstlane_b32 s7, v2
    s_bfe_u32 s4, s2, 0x30003
    s_lshr_b32 s5, s2, 6
    s_and_b32 s6, s3, 3
    s_lshl_b32 s30, s5, 2
    s_add_u32 s6, s6, s30
    s_lshr_b32 s24, s3, 2
    s_lshl_b32 s24, s24, 3
    s_add_u32 s24, s24, s4
    s_and_b32 s28, s7, 3
    v_and_b32 v2, 3, v2
    s_cmp_lt_u32 s7, 4
    s_cbranch_scc1 L_C""")
    vLane = 1; vQ = 2
    R = RegAlloc(3)
    t0 = R.alloc(); t1 = R.alloc(); t2 = R.alloc()
    vAW2 = R.alloc(12); vOH = R.alloc(); vOH2 = R.alloc(); vRW = R.alloc(3); vRR = R.alloc(); vOO = R.alloc(); vN = R.alloc(); vNA = R.alloc(); vFA = R.alloc()
    vF = R.alloc(4); vD = R.alloc()
    vb2 = R.alloc(4, 2)
    base = R.n
    R1 = RegAlloc(base)
    vAX = R1.alloc(8); vAW = R1.alloc(2); vFS = R1.alloc(); vFV = R1.alloc(3); vC0 = R1.alloc(2, 2)
    acc = R1.alloc(48, 4)
    fx = [R1.alloc(4, 4) for _ in range(3)]
    fw = [R1.alloc(12, 4) for _ in range(3)]
    T = R1.alloc(8, 4); O = [R1.alloc(4, 4) for _ in range(6)]
    RL = RegAlloc(base)
    vOX = RL.alloc(4); vOW = RL.alloc(3); vOW2 = RL.alloc(4)
    assert RL.n <= acc
    R2 = RegAlloc(R1.n)
    acc2 = R2.alloc(32, 4)
    fw2 = [R2.alloc(8, 4) for _ in range(2)]
    st0 = R2.alloc(16, 4)
    lastbuf = acc2
    R2b = RegAlloc(acc)
    fh = [R2b.alloc(4, 4) for _ in range(22)]
    assert R2b.n <= T
    nv = R2.n

    def common_setup():
        a("""s_add_u32 s30, s3, 1
        s_and_b32 s30, s30, 3
        s_lshl_b32 s30, s30, 1
        s_lshl_b32 s25, s5, 3
        s_add_u32 s25, s25, s30
        s_lshr_b32 s30, s3, 2
        s_add_u32 s25, s25, s30
        s_lshr_b32 s29, s7, 2
        s_lshl_b32 s26, s28, 12
        s_mul_i32 s27, s28, 11""")
        a(f"""v_lshrrev_b32 v{t0}, 5, v{vLane}
        v_lshlrev_b32 v{t0}, 4, v{t0}
        v_bfe_u32 v{t1}, v{vLane}, 2, 3
        v_add_u32 v{t0}, v{t0}, v{t1}
        v_lshlrev_b32 v{t0}, 7, v{t0}
        v_bfe_u32 v{t1}, v{vLane}, 3, 2
        v_xor_b32 v{t1}, v{t1}, v{vQ}
        v_lshl_add_u32 v{t0}, v{t1}, 5, v{t0}
        v_and_b32 v{t1}, 3, v{vLane}
        v_lshl_add_u32 v{t0}, v{t1}, 3, v{t0}
        v_lshl_add_u32 v{vAW2}, v{vQ}, 12, v{t0}
        v_xor_b32 v{vAW2+1}, 32, v{vAW2}
        v_xor_b32 v{vAW2+2}, 64, v{vAW2}
        v_xor_b32 v{vAW2+3}, 0x60, v{vAW2}
        v_add_u32 v{vAW2+4}, 65536, v{vAW2}
        v_add_u32 v{vAW2+5}, 65536, v{vAW2+1}
        v_add_u32 v{vAW2+6}, 65536, v{vAW2+2}
        v_add_u32 v{vAW2+7}, 65536, v{vAW2+3}
        v_add_u32 v{vAW2+8}, 131072, v{vAW2}
        v_add_u32 v{vAW2+9}, 131072, v{vAW2+1}
        v_add_u32 v{vAW2+10}, 131072, v{vAW2+2}
        v_add_u32 v{vAW2+11}, 131072, v{vAW2+3}
        v_lshrrev_b32 v{t0}, 4, v{vLane}
        v_lshlrev_b32 v{t0}, 9, v{t0}
        v_and_b32 v{t1}, 15, v{vLane}
        v_lshl_add_u32 v{vOH2}, v{t1}, 4, v{t0}
        v_lshlrev_b32 v{vOH}, 4, v{vLane}
        s_cmp_eq_u32 s29, 0
        s_cselect_b32 s30, {DBASE + 16384}, 0
        v_add_u32 v{t0}, s30, v{vOH}""")
        for o in range(1, 4):
            a(f"v_xor_b32 v{t1}, {o}, v{vQ}")
            a(f"v_mul_u32_u24 v{t1}, 6144, v{t1}")
            a(f"v_add_u32 v{vRW+o-1}, v{t1}, v{t0}")
        a(f"v_mul_u32_u24 v{t1}, 6144, v{vQ}")
        a(f"v_add_u32 v{vRR}, v{t1}, v{t0}")
        a(f"""v_and_b32 v{t0}, 31, v{vLane}
        v_lshlrev_b32 v{vNA}, 2, v{t0}
        v_lshrrev_b32 v{t1}, 5, v{vLane}
        v_lshlrev_b32 v{t1}, 4, v{t1}
        v_lshl_add_u32 v{vOO}, v{t0}, 10, v{t1}
        v_and_b32 v{vFA}, 15, v{vLane}
        v_lshlrev_b32 v{vFA}, 2, v{vFA}
        s_lshl_b32 s30, s25, 1
        s_add_u32 s30, s30, s29
        s_mul_i32 s68, s30, {MBS}
        s_lshl_b32 s69, s4, 7
        s_lshl_b32 s31, s28, 5
        s_add_u32 s69, s69, s31
        s_lshl_b32 s67, s30, 15
        s_add_u32 s67, s67, s69""")
    def goff(pos, shift, dst):
        a(f"s_add_u32 {dst}, s27, {pos}")
        a(f"s_lshl_b32 {dst}, {dst}, {shift}")
    def common_srds():
        a(f"""s_mov_b32 s40, s22
        s_mov_b32 s41, s23
        s_mov_b32 s42, {H_BYTES}
        s_mov_b32 s43, 0x20000
        s_mov_b32 s44, s20
        s_mov_b32 s45, s21
        s_mov_b32 s46, 256
        s_mov_b32 s47, 0x20000
        s_add_u32 s52, s18, s67
        s_addc_u32 s53, s19, 0
        s_sub_u32 s54, 2097152, s67
        s_mov_b32 s55, 0x20000""")
    def b2_load():
        a("""s_mov_b32 s32, s16
        s_mov_b32 s33, s17
        s_mov_b32 s34, 1024
        s_mov_b32 s35, 0x20000""")
        a(f"v_lshrrev_b32 v{t1}, 4, v{vLane}")
        a(f"v_lshlrev_b32 v{t1}, 3, v{t1}")
        a(f"buffer_load_dwordx2 {vr(vb2,2)}, v{t1}, s[32:35], s69 offen")
    def WS(pos):
        return [st0, fw2[0], O[0]][pos % 3] if deep else (st0 if pos % 2 == 0 else fw2[0])
    def wrd(pos):
        off = w2_lds(pos); k = off >> 16; off -= k << 16
        W = WS(pos)
        return [f"ds_read_b64_tr_b16 {vr(W+4*o+2*q,2)}, v{vAW2+4*k+o} offset:{off+q*1024}" for o in range(4) for q in range(2)]
    def stage0():
        for x in wrd(0): a(x)
    def ph2_scalars():
        a(f"s_add_u32 s63, s68, {MB_BYTES}")
        a("s_add_u32 s36, s22, s68")
        a("s_addc_u32 s37, s23, 0")
        a(f"s_mov_b32 s38, {MB_BYTES}")
        a("s_mov_b32 s39, 0x20000")
        a("s_lshl_b32 s31, s28, 4")
        a("s_mov_b32 s60, 0x00f8000f")
        a("s_mov_b32 s61, 0x78000780")
        a("s_lshr_b64 s[60:61], s[60:61], s31")
        a(f"s_and_b32 s56, s60, 0xffff")
    def acc2_zero():
        for i in range(8, 32):
            a(f"v_mov_b32 v{acc2+i}, 0")
    def acc2_bias():
        for i in range(4):
            a(f"v_lshlrev_b32 v{acc2+2*i}, 16, v{vb2+(i&1)}")
            a(f"v_and_b32 v{acc2+2*i+1}, 0xffff0000, v{vb2+(i&1)}")
    def poll_issue(k, o=a):
        o(f"buffer_load_dword v{vF+k}, v{vFA}, s[40:43], s63 offen sc1")
    def chk(k, st, o=a):
        lvl = st + 1 if staged else 3
        o(f"v_subrev_u32 v{vD}, s62, v{vF+k}")
        o(f"v_subrev_u32 v{vD}, {lvl}, v{vD}")
        o(f"v_cmp_ge_u32 vcc, {3-lvl}, v{vD}")
        o("s_nop 1")
        o(f"s_and_b32 s31, vcc_lo, s{56+st}")
        o(f"s_cmp_eq_u32 s31, s{56+st}")

    a.c("loader waves")
    a({"r2": """s_add_u32 s62, s5, s4
    s_and_b32 s62, s62, 1
    s_lshl_b32 s62, s62, 2
    s_lshr_b32 s30, s3, 2
    s_add_u32 s30, s30, s3
    s_and_b32 s30, s30, 1
    s_lshl_b32 s30, s30, 1
    s_add_u32 s62, s62, s30""",
       "none": "s_mov_b32 s62, 4",
       "xcd": "s_mov_b32 s62, s3",
       "cu": "s_lshl_b32 s62, s5, 1\ns_add_u32 s62, s62, s4\ns_and_b32 s62, s62, 7",
       "r2b": "s_add_u32 s62, s5, s4\ns_and_b32 s62, s62, 1\ns_lshl_b32 s62, s62, 2\ns_add_u32 s62, s62, s3\ns_and_b32 s62, s62, 7",
       "r4": "s_add_u32 s62, s5, s4\ns_and_b32 s62, s62, 3\ns_lshl_b32 s62, s62, 1",
       "r1": "s_add_u32 s62, s5, s4\ns_and_b32 s62, s62, 1\ns_add_u32 s62, s62, 4",
       }[rot])
    a(f"""v_lshrrev_b32 v{t0}, 3, v{vLane}
    v_lshl_add_u32 v{t0}, v{vQ}, 5, v{t0}
    v_lshlrev_b32 v{t0}, 10, v{t0}
    v_lshrrev_b32 v{t1}, 4, v{vLane}
    v_and_b32 v{t2}, 7, v{vLane}
    v_xor_b32 v{t1}, v{t1}, v{t2}
    v_lshl_add_u32 v{vOX}, v{t1}, 4, v{t0}
    v_xor_b32 v{t1}, 4, v{t1}
    v_lshl_add_u32 v{vOX+1}, v{t1}, 4, v{t0}
    v_add_u32 v{vOX+1}, {8192-1024}, v{vOX+1}
    v_add_u32 v{vOX+2}, {2*(8192-1024)}, v{vOX}
    v_add_u32 v{vOX+3}, {2*(8192-1024)}, v{vOX+1}
    v_mul_u32_u24 v{t0}, 192, v{vQ}
    v_add_u32 v{t0}, v{t0}, v{vLane}""")
    for j in range(3):
        if j:
            a(f"v_add_u32 v{t0}, 64, v{t0}")
        a(f"v_mul_u32_u24 v{t1}, 43691, v{t0}")
        a(f"v_lshrrev_b32 v{t1}, 19, v{t1}")
        a(f"v_mul_u32_u24 v{t2}, 12, v{t1}")
        a(f"v_sub_u32 v{t2}, v{t0}, v{t2}")
        a(f"v_mul_u32_u24 v{t1}, 2752, v{t1}")
        a(f"v_lshl_add_u32 v{vOW+j}, v{t2}, 4, v{t1}")
        if j:
            a(f"v_subrev_u32 v{vOW+j}, {1024*j}, v{vOW+j}")
    a("""s_lshl_b32 s56, s28, 12
    s_mul_i32 s57, s28, 3072
    s_add_u32 s57, s57, 16384
    s_mul_i32 s58, s24, 192
    s_lshl_b32 s59, s6, 17
    s_sub_u32 s38, 1409024, s58
    s_cmp_eq_u32 s24, 15
    s_cselect_b32 s38, 0, s38
    s_cselect_b32 s34, 0, 131072
    s_mov_b32 s35, 0x20000
    s_mov_b32 s39, 0x20000
    s_waitcnt lgkmcnt(0)""")
    stamp(1); xst(1)
    a("""s_add_u32 s32, s8, s59
    s_addc_u32 s33, s9, 0
    s_add_u32 s36, s10, s58
    s_addc_u32 s37, s11, 0""")
    items = []
    for c in range(8):
        slot = c % 4
        for j in range(7):
            l = []
            if j == 0:
                l += [f"s_add_u32 m0, s56, {slot*SLOT}", "s_lshl_b32 s63, s62, 7"]
            if j == 4:
                l += [f"s_add_u32 m0, s57, {slot*SLOT}", "s_mul_i32 s63, s62, 176128", "s_add_u32 s62, s62, 1", "s_and_b32 s62, s62, 7"]
            if j < 4: l.append(f"buffer_load_dwordx4 v{vOX+j}, s[32:35], s63 offen offset:{1024*j} lds")
            else: l.append(f"buffer_load_dwordx4 v{vOW+j-4}, s[36:39], s63 offen offset:{1024*(j-4)} lds")
            items.append((l, f"c{c}", c - 3))
    W2B = {0: -9, 1: -9, 2: -9, 3: 5, 4: 6, 5: 6, 6: 7, 7: 7}
    for pos in range(early):
        for j in range(4):
            items.append((("W2", pos, j), f"p{pos}", W2B[pos]))
    vmL = Cnt(); ptr = [0]
    def emit(n, bar):
        while ptr[0] < min(n, len(items)) and items[ptr[0]][2] <= bar:
            l, tag, _ = items[ptr[0]]
            if l[0] == "W2":
                _, pos, j = l
                if j == 0:
                    a(f"s_add_u32 m0, s26, {w2_lds(pos)}")
                    goff(pos, 15, "s66")
                a(f"buffer_load_dwordx4 v{vOW2+j}, s[48:51], s66 offen offset:{1024*j} lds")
            else:
                for x in l: a(x)
            vmL.issue(tag); ptr[0] += 1
    def dma2(pos):
        a(f"s_add_u32 m0, s26, {w2_lds(pos)}")
        goff(pos, 15, "s66")
        for j in range(4):
            a(f"buffer_load_dwordx4 v{vOW2+j}, s[48:51], s66 offen offset:{1024*j} lds")
    emit(pre1, -1); xst(2)
    common_setup()
    common_srds()
    a(f"""v_lshrrev_b32 v{t0}, 3, v{vLane}
    v_bfe_u32 v{t1}, v{vLane}, 4, 2
    v_lshlrev_b32 v{t1}, 1, v{t1}
    v_and_b32 v{t2}, 7, v{vLane}
    v_xor_b32 v{t1}, v{t1}, v{t2}
    v_lshlrev_b32 v{t0}, 10, v{t0}
    v_lshl_add_u32 v{vOW2}, v{t1}, 4, v{t0}""")
    for j in range(1, 4):
        a(f"v_add_u32 v{vOW2+j}, {j*(8192-1024)}, v{vOW2}")
    a("""s_lshl_b32 s30, s4, 7
    s_add_u32 s48, s14, s30
    s_addc_u32 s49, s15, 0
    s_sub_u32 s50, 1409024, s30
    s_mov_b32 s51, 0x20000""")
    if lsp:
        a("""s_lshl_b32 s30, s2, 2
        s_add_u32 s30, s30, s28
        s_mul_i32 s30, s30, 1376
        s_and_b32 s30, s30, 0xffffffc0
        s_add_u32 s58, s14, s30
        s_addc_u32 s59, s15, 0
        s_lshr_b32 s30, s2, 3
        s_mul_i32 s30, s30, 43
        s_mul_i32 s31, s28, 11
        s_add_u32 s30, s30, s31
        s_min_u32 s30, s30, 1365
        s_lshl_b32 s30, s30, 10
        s_add_u32 s60, s14, s30
        s_addc_u32 s61, s15, 0""")
        lds_ = []
        for i in range(22):
            lds_.append(f"s_load_dword s31, s[60:61], {(i//2)*1024+384+(i&1)*64}")
            if lmall: lds_.append(f"s_load_dword s31, s[58:59], {min(i*64, 1372)}")
        per = (len(lds_) + len(lsp) - 1) // len(lsp)
    xst(3)
    for i in range(8):
        la = LA[i] if isinstance(LA, (list, tuple)) else LA
        emit(7 * (i + 1) + la, i - 1)
        fstamp(2*i)
        a(f"s_waitcnt vmcnt({vmL.need(f'c{i}')})")
        fstamp(2*i+1)
        if i == 0: xst(4)
        a("s_barrier")
        if i == 0: stamp(2)
        if i == 7: stamp(3)
        if lsp and i in lsp:
            for x in lds_[lsp.index(i)*per:(lsp.index(i)+1)*per]: a(x)
    emit(999, 7)
    b2_load()
    stamp(4)
    a("s_waitcnt lgkmcnt(0)")
    if npz:
        a(f"s_add_u32 s30, s27, {early}")
        a("s_lshl_b32 s30, s30, 5")
        a("s_lshr_b32 s31, s2, 3")
        a(f"s_mul_i32 s31, s31, {(npz+15)//16}")
        a("s_add_u32 s30, s30, s31")
        a("s_min_u32 s30, s30, 1368")
        a("s_lshl_b32 s30, s30, 10")
        a("s_add_u32 s64, s14, s30")
        a("s_addc_u32 s65, s15, 0")
    a(f"buffer_load_dword v{vN}, v{vNA}, s[44:47], 0 offen sc1")
    ph2_scalars()
    for i in range(npz): a(f"s_load_dword s59, s[64:65], {i*64}")
    acc2_zero()
    a("s_waitcnt vmcnt(0)")
    acc2_bias()
    stage0()
    stamp(5); xst(12)
    a("s_barrier")
    stamp(6)
    if ldel: a(f"s_sleep {ldel}")
    if trot:
        n = 10 - early
        a(f"s_mul_i32 s64, s5, {trot}")
        for k in range(n):
            a(f"s_cmp_ge_u32 s64, {n}")
            a(f"s_cselect_b32 s65, {n}, 0")
            a("s_sub_u32 s64, s64, s65")
            a("s_lshl_b32 s65, s64, 14")
            a("s_add_u32 s65, s65, s26")
            a(f"s_add_u32 m0, s65, {w2_lds(early)}")
            a("s_add_u32 s66, s64, s27")
            a(f"s_add_u32 s66, s66, {early}")
            a("s_lshl_b32 s66, s66, 15")
            for j in range(4):
                a(f"buffer_load_dwordx4 v{vOW2+j}, s[48:51], s66 offen offset:{1024*j} lds")
            a("s_add_u32 s64, s64, 1")
    else:
        for pos in range(early, 10):
            if tthr is not None and pos > early: a(f"s_waitcnt vmcnt({tthr})")
            dma2(pos)
    poll_issue(0)
    a("s_waitcnt lgkmcnt(0)")
    a("s_barrier")
    dma2(10)
    poll_issue(1)
    a("s_waitcnt vmcnt(5)")
    a("s_branch L_PHASE2")

    a.label("L_NOFLAG")
    a("s_waitcnt vmcnt(0) lgkmcnt(0)")
    a("s_barrier")
    stage0()
    acc2_zero(); acc2_bias()
    a("s_branch L_C2")
    a.raw("STUBS_HERE")
    a.label("L_PAD")
    a.raw("PAD_HERE")
    a.label("L_C")
    xst(5)
    common_setup()
    a(f"""v_and_b32 v{t0}, 31, v{vLane}
    v_lshrrev_b32 v{t1}, 1, v{t0}
    v_and_b32 v{t1}, 7, v{t1}
    v_lshrrev_b32 v{t2}, 5, v{vLane}
    v_xor_b32 v{t1}, v{t1}, v{t2}
    v_lshlrev_b32 v{t0}, 7, v{t0}
    v_lshl_add_u32 v{t0}, v{vQ}, 12, v{t0}""")
    for t in range(4):
        a(f"v_xor_b32 v{vAX+t}, {2*t}, v{t1}")
        a(f"v_lshl_add_u32 v{vAX+t}, v{vAX+t}, 4, v{t0}")
        a(f"v_add_u32 v{vAX+4+t}, {2*SLOT}, v{vAX+t}")
    bA = acc2; bB = acc2 + 4
    for i in range(12): a(f"v_mov_b32 v{bB+i}, 0")
    a(f"""v_mov_b32 v{bA+2}, 0
    v_mov_b32 v{bA+3}, 0
    v_mul_u32_u24 v{bB+4}, 0x3f80, v{t2}
    v_xor_b32 v{bB}, 0x3f80, v{bB+4}
    v_mov_b32 v{bB+9}, v{bB}
    v_lshlrev_b32 v{t1}, 3, v{t2}
    v_bfe_u32 v{t0}, v{vLane}, 2, 2
    v_add_u32 v{t0}, v{t0}, v{t1}
    v_mul_u32_u24 v{t0}, 192, v{t0}
    v_bfe_u32 v{t1}, v{vLane}, 4, 1
    v_lshl_add_u32 v{t0}, v{t1}, 5, v{t0}
    v_and_b32 v{t1}, 3, v{vLane}
    v_lshl_add_u32 v{t0}, v{t1}, 3, v{t0}
    v_add_u32 v{vAW}, 16384, v{t0}
    v_add_u32 v{vAW+1}, {2*SLOT+16384}, v{t0}
    v_mov_b32 v{vC0}, 0x{f32bits(C0):08x}
    v_mov_b32 v{vC0+1}, 0x{f32bits(C0):08x}
    s_mov_b32 s48, 0x{f32bits(C1):08x}
    s_mov_b32 s49, 0x{f32bits(C1):08x}
    v_bfe_u32 v{t0}, v{vLane}, 4, 1
    v_mul_u32_u24 v{t0}, {MBS}, v{t0}
    v_add_u32 v{t0}, v{t0}, v{vFA}
    v_lshlrev_b32 v{t2}, 1, v{vLane}
    v_lshlrev_b32 v{vFS}, 24, v{vLane}
    s_mul_i32 s58, s24, 192
    s_lshl_b32 s59, s6, 2
    s_add_u32 s59, s59, s7
    s_mul_i32 s62, s59, {MBS}
    s_mul_i32 s61, s24, 6144
    s_add_u32 s50, s62, s61
    s_add_u32 s51, s50, 4096
    s_lshl_b32 s63, s24, 2
    s_add_u32 s62, s62, s63
    s_add_u32 s66, s62, {MB_BYTES}
    s_mul_i32 s63, s25, {2*MBS}
    s_add_u32 s63, s63, {MB_BYTES}
    s_lshr_b32 s59, s59, 1
    s_waitcnt lgkmcnt(0)""")
    stamp(1); xst(6)
    a(f"""s_mov_b32 s32, s12
    s_mov_b32 s33, s13
    s_mov_b32 s34, 2752
    s_mov_b32 s35, 0x20000
    buffer_load_ushort v{bA}, v{t2}, s[32:35], s58 offen
    buffer_load_ushort v{bA+1}, v{t2}, s[32:35], s58 offen offset:128""")
    common_srds()
    a(f"""s_or_b32 s61, s4, s7
    s_cmp_lg_u32 s61, 0
    s_cbranch_scc1 L_NOLEAD
    buffer_load_dword v{vF}, v{t0}, s[40:43], s63 offen sc1
    v_bfe_u32 v{t1}, v{vLane}, 4, 1
    v_sub_u32 v{t1}, v{vLane}, v{t1}
    v_add_u32 v{t1}, 2, v{t1}
    s_nop 0""")
    a.label("L_NOLEAD")
    xst(7)
    def lead2():
        a(f"""s_or_b32 s61, s4, s7
        s_cmp_lg_u32 s61, 0
        s_cbranch_scc1 L_NOLEAD2
        v_bfe_u32 v{t1}, v{vLane}, 4, 1
        v_sub_u32 v{t1}, v{vLane}, v{t1}
        v_add_u32 v{t1}, 2, v{t1}
        v_lshrrev_b32 v{t1}, v{t1}, v{vF}
        v_and_b32 v{t1}, 1, v{t1}
        v_cmp_eq_u32 vcc, 0, v{t1}
        s_lshl_b32 s30, s25, 2
        s_nop 0
        s_and_b32 s31, vcc_lo, 0x7fff
        s_lshl_b32 s31, s31, 2
        s_and_b32 s61, vcc_lo, 0x7fff0000
        s_lshl_b32 s61, s61, 1
        s_or_b32 s31, s31, s61
        s_or_b32 s31, s31, 1
        v_mov_b32 v{t1}, s31
        buffer_store_dword v{t1}, v{vFS}, s[44:47], s30 offen sc1""")
        a.label("L_NOLEAD2")
    ph2_scalars()
    a("s_mov_b32 s67, 0")
    def rd(c, t, s):
        slot = c % 4
        hi = slot >> 1; off = (slot & 1) * SLOT
        l = [f"ds_read_b128 {vr(fx[s],4)}, v{vAX+4*hi+t} offset:{off}"]
        for p in range(3):
            for q in range(2):
                l.append(f"ds_read_b64_tr_b16 {vr(fw[s]+4*p+2*q,2)}, v{vAW+hi} offset:{off+t*3072+q*768+p*64}")
        return l
    def mf(s, z=False):
        return [f"v_mfma_f32_32x32x16_bf16 {vr(acc+16*p,16)}, {vr(fw[s]+4*p,4)}, {vr(fx[s],4)}, {'0' if z else vr(acc+16*p,16)}" for p in range(3)]
    def inter(m, r):
        for x in [m[0], r[0], r[1], r[2], m[1], r[3], r[4], m[2], r[5], r[6]]:
            a(x)
    vm = Cnt()
    def hstore(idx):
        so = "s50" if idx < 4 else "s51"
        if idx == 5: gst(8)
        if late_st:
            if idx < 5:
                gst(2 + idx); return
            for k in range(5):
                a(f"buffer_store_dwordx4 {vr(O[k],4)}, v{vOH}, s[40:43], {'s50' if k < 4 else 's51'} offen offset:{(k%4)*1024} sc1")
        a(f"buffer_store_dwordx4 {vr(O[idx],4)}, v{vOH}, s[40:43], {so} offen offset:{(idx%4)*1024} sc1")
        vm.issue(f"st{idx}")
        gst(2 + idx)
        if idx == 5: gst(10, True)
    def flag(lvl):
        a(f"buffer_store_dword v{vFV+lvl-1}, v{vFS}, s[40:43], s66 offen sc1")
        vm.issue(f"f{lvl}")
    xst(8)
    for c in range(7):
        fstamp(2*c)
        a("s_barrier")
        fstamp(2*c+1)
        if c == 0: stamp(2)
        if c == 5:
            a(f"buffer_load_dword v{vN}, v{vNA}, s[44:47], 0 offen sc1")
            b2_load()
        for x in rd(c, 0, (4*c) % 3): a(x)
        if c >= 1:
            inter(mf((4*c - 1) % 3), rd(c, 1, (4*c+1) % 3))
        else:
            for x in rd(c, 1, (4*c+1) % 3): a(x)
        a("s_waitcnt lgkmcnt(7)")
        inter(mf((4*c) % 3, c == 0), rd(c, 2, (4*c+2) % 3))
        a("s_waitcnt lgkmcnt(7)")
        inter(mf((4*c+1) % 3), rd(c, 3, (4*c+3) % 3))
        a("s_waitcnt lgkmcnt(7)")
        for x in mf((4*c+2) % 3): a(x)
        if c == bat:
            a("s_waitcnt vmcnt(0)")
            for p in range(3):
                a(f"v_mfma_f32_32x32x16_bf16 {vr(acc+16*p,16)}, {vr(bA,4)}, {vr(bB+4*p,4)}, {vr(acc+16*p,16)}")
            lead2()
        a("s_waitcnt lgkmcnt(0)")
        if c == 6:
            for x in mf(27 % 3): a(x)
    fstamp(14)
    a("s_barrier")
    fstamp(15); gst(12); gst(13, True)
    stamp(3)
    LX = lambda t: lastbuf + 4*t
    LW = lambda p, t: lastbuf + 16 + 16*p + 4*t
    def rx(t): return f"ds_read_b128 {vr(LX(t),4)}, v{vAX+4+t} offset:{SLOT}"
    def rw(p, t): return [f"ds_read_b64_tr_b16 {vr(LW(p,t)+2*q,2)}, v{vAW+1} offset:{SLOT+t*3072+q*768+p*64}" for q in range(2)]
    def m(p, t): return f"v_mfma_f32_32x32x16_bf16 {vr(acc+16*p,16)}, {vr(LW(p,t),4)}, {vr(LX(t),4)}, {vr(acc+16*p,16)}"
    for t in range(4):
        a(rx(t))
        for x in rw(0, t): a(x)
    a("s_waitcnt lgkmcnt(9)"); a(m(0, 0))
    for x in rw(1, 0) + rw(1, 1): a(x)
    a("s_waitcnt lgkmcnt(10)"); a(m(0, 1))
    for x in rw(1, 2) + rw(1, 3): a(x)
    a("s_waitcnt lgkmcnt(11)"); a(m(0, 2))
    for x in rw(2, 0) + rw(2, 1): a(x)
    a("s_waitcnt lgkmcnt(12)"); a(m(0, 3))
    for x in rw(2, 2): a(x)
    a("s_waitcnt lgkmcnt(12)"); a(m(1, 0))
    for x in rw(2, 3): a(x)
    a("s_waitcnt lgkmcnt(8)"); a(m(1, 1))
    stamp(4); xst(9); gst(1); gst(9, True)
    a("s_cmp_eq_u32 s24, 15")
    a("s_cbranch_scc1 L_NOFLAG")
    a("s_nop 1")
    rest = [m(1, 2), m(1, 3), "W0", m(2, 0), m(2, 1), m(2, 2), m(2, 3)]
    cost = 0; nxt = 24
    for ins in gelu8_sc(acc, T, O[0], 48, vC0):
        a(ins)
        cost += 8 if ("exp" in ins or "rcp" in ins) else 4
        if cost >= nxt and rest:
            x = rest.pop(0)
            if x == "W0":
                a("s_waitcnt lgkmcnt(0)"); x = rest.pop(0)
            a(x); nxt = cost + 24
    assert not rest
    hstore(0)
    for ins in gelu8_pk(acc + 8, T, O[1], 48, vC0): a(ins)
    hstore(1)
    a("s_waitcnt vmcnt(0)" if late_st else "s_waitcnt vmcnt(2)")
    a.label("L_PN")
    a(f"v_readlane_b32 s31, v{vN}, s59")
    a("s_add_u32 s67, s67, 1")
    a("s_nop 1")
    a("s_cmp_eq_u32 s31, 0")
    a("s_cbranch_scc1 L_PN_RETRY")
    a.label("L_PN_OK")
    stubs.label("L_PN_RETRY")
    stubs(f"s_cmp_gt_u32 s67, {LIM}")
    stubs("s_cbranch_scc1 L_PN_OK")
    stubs("s_sleep 16")
    stubs(f"buffer_load_dword v{vN}, v{vNA}, s[44:47], 0 offen sc1")
    stubs("s_waitcnt vmcnt(0)")
    stubs("s_branch L_PN")
    a(f"v_mov_b32 v{vFV}, s31")
    a(f"v_add_u32 v{vFV+1}, 1, v{vFV}")
    a(f"v_add_u32 v{vFV+2}, 2, v{vFV}")
    a("s_cmp_eq_u32 s24, 14")
    a("s_cbranch_scc1 L_ST14")
    stubs.label("L_ST14")
    if d14: stubs(f"s_sleep {d14}")
    stubs("s_barrier")
    stubs("s_branch L_LASTF")
    for idx in range(2, 6):
        for ins in gelu8_pk(acc + 8*idx, T, O[idx], 48, vC0): a(ins)
        hstore(idx)
        if idx == bs_at: a("s_barrier")
        if staged and idx == f1at:
            a(f"s_waitcnt vmcnt({vm.need('st1')})")
            flag(1)
    stamp(5); xst(10)
    if staged:
        a(f"s_waitcnt vmcnt({vm.need('st3')})")
        flag(2)
    a.label("L_LASTF")
    stage0()
    acc2_zero(); acc2_bias()
    a(f"s_waitcnt vmcnt(0)")
    stamp(6); xst(11); gst(11)
    flag(3)
    a.label("L_C2")
    poll_issue(1)
    a(f"v_mov_b32 v{vF}, 0")
    a("s_waitcnt lgkmcnt(0)")
    a("s_barrier")

    a.label("L_PHASE2")
    stamp(7)
    a("s_mov_b32 s67, 0")
    a.label("L_CN")
    a(f"v_readlane_b32 s62, v{vN}, s25")
    a("s_add_u32 s67, s67, 1")
    a("s_nop 1")
    a("s_cmp_eq_u32 s62, 0")
    a("s_cbranch_scc1 L_CN_RETRY")
    a.label("L_CN_OK")
    stubs.label("L_CN_RETRY")
    stubs(f"s_cmp_gt_u32 s67, {LIM}")
    stubs("s_cbranch_scc1 L_CN_OK")
    stubs("s_sleep 16")
    stubs(f"buffer_load_dword v{vN}, v{vNA}, s[44:47], 0 offen sc1")
    stubs("s_waitcnt vmcnt(0)")
    stubs("s_branch L_CN")
    a("s_sub_u32 s62, s62, 1")
    chk(0, 0)
    a("s_cbranch_scc1 L_GO")
    if npoll == 1:
        a.label("L_POLL")
        a(f"s_waitcnt vmcnt(0)")
        chk(1, 0)
        a("s_cbranch_scc1 L_GO")
        a("s_add_u32 s67, s67, 1")
        if psleep: a(f"s_sleep {psleep}")
        poll_issue(1)
        a(f"s_cmp_le_u32 s67, {LIM}")
        a("s_cbranch_scc1 L_POLL")
    else:
        order = list(range(1, npoll + 1))
        for k in order[1:]:
            poll_issue(k)
            if k != order[-1]: a(f"s_sleep {pgap}")
        a.label("L_POLL")
        for k in order:
            a(f"s_waitcnt vmcnt({npoll-1})")
            chk(k, 0)
            a("s_cbranch_scc1 L_GO")
            if psleep: a(f"s_sleep {psleep}")
            poll_issue(k)
        a("s_add_u32 s67, s67, 1")
        a(f"s_cmp_le_u32 s67, {LIM}")
        a("s_cbranch_scc1 L_POLL")
    a.label("L_GO")
    stamp(8)
    vm = Cnt(); lg = Cnt()
    def hload(s):
        if s % 2 == 0: goff(s >> 1, 11, "s66")
        a(f"buffer_load_dwordx4 {vr(fh[s],4)}, v{vOH2}, s[36:39], s66 offen offset:{(s&1)*256} sc1")
        vm.issue(f"h{s}")
    if prio2 is not None:
        a("s_cmp_lt_u32 s7, 4")
        a("s_cbranch_scc1 L_NOPRIO")
        a(f"s_setprio {prio2}")
        a.label("L_NOPRIO")
    for s in range(PF): hload(s)
    D = 2 if deep else 1
    if deep:
        for x in wrd(1): a(x)
        lg.issue("w1", 8)
    for s in range(22):
        pos = s >> 1; mi = s & 1
        assert early == 5
        if mi == 0 and pos + D == early:
            a("s_waitcnt lgkmcnt(0)")
            a("s_barrier")
        w = f"s_waitcnt vmcnt({vm.need(f'h{s}')})"
        if mi == 0 and pos >= 1: w += f" lgkmcnt({lg.need(f'w{pos}')})"
        a(w)
        if s == 0: stamp(9)
        if s == 21: stamp(10)
        W = WS(pos)
        r = wrd(pos + D) if pos + D <= 10 else []
        r = (r[:rsplit] if mi == 0 else r[rsplit:])
        per_ = (len(r) + 3) // 4
        for o in range(4):
            ac = vr(acc2 + 8*o + 4*mi, 4)
            a(f"v_mfma_f32_16x16x32_bf16 {ac}, {vr(W+4*o,4)}, {vr(fh[s],4)}, {ac}")
            for x in r[per_*o:per_*o+per_]:
                a(x); lg.issue(f"w{pos+D}")
        if s + PF < 22: hload(s + PF)
    stamp(11)
    a("s_nop 6")
    for o in range(1, 4):
        if o == 2: a("s_nop 1")
        for e in range(2):
            a(f"ds_write_b128 v{vRW+o-1}, {vr(acc2+8*o+4*e,4)} offset:{(o-1)*2048+e*1024}")
    a("s_waitcnt lgkmcnt(0)")
    a("s_barrier")
    stamp(12)
    rdm = fh[0]
    for o in range(3):
        for e in range(2):
            a(f"ds_read_b128 {vr(rdm+8*o+4*e,4)}, v{vRR} offset:{o*2048+e*1024}")
    for o in range(3):
        a(f"s_waitcnt lgkmcnt({4-2*o})")
        for i in range(0, 8, 2):
            a(f"v_pk_add_f32 {vr(acc2+i,2)}, {vr(acc2+i,2)}, {vr(rdm+8*o+i,2)}")
    od = fw2[0]
    for i in range(4):
        a(f"v_cvt_pk_bf16_f32 v{od+i}, v{acc2+2*i}, v{acc2+2*i+1}")
    a("s_nop 1")
    a(f"v_permlane16_swap_b32 v{od}, v{od+2}")
    a(f"v_permlane16_swap_b32 v{od+1}, v{od+3}")
    a(f"buffer_store_dwordx4 {vr(od,4)}, v{vOO}, s[52:55], 0 offen")
    if prof:
        stamp(13)
        a("s_waitcnt vmcnt(0)")
        stamp(14)
        a("s_waitcnt lgkmcnt(0)")
        if prof != 2:
            a(f"s_mov_b32 s{SB+30}, s67")
            a(f"s_mov_b32 s{SB+31}, 0")
        a(f"s_add_u32 s44, s22, {128<<20}")
        a(f"s_addc_u32 s45, s23, 0")
        a("s_mov_b32 s46, 0x1000000")
        a("s_mov_b32 s47, 0x20000")
        a("s_lshl_b32 s48, s2, 3")
        a("s_add_u32 s48, s48, s7")
        a(f"s_mul_i32 s48, s48, {NST*8}")
        a("v_mov_b32 v1, 0")
        for i in range(NST):
            a(f"v_mov_b32 v2, s{SB+2*i}")
            a(f"v_mov_b32 v3, s{SB+2*i+1}")
            a(f"buffer_store_dwordx2 v[2:3], v1, s[44:47], s48 offen offset:{8*i}")
            a("s_nop 1")
    a.label("L_END")
    a("s_endpgm")
    return a.text().replace('STUBS_HERE\n', stubs.text()), nv

DOC = """; ---------------------------------------------------------------------------------------------
;           gelu = x / (1 + exp2(x*(c0 + c1*x^2))) in fp32 and store bf16 h to d_ws in MFMA
; ---------------------------------------------------------------------------------------------
"""
def assemble_labels(text):
    import subprocess, re
    open("lay.s", "w").write(text)
    subprocess.run(["clang", "-x", "assembler", "-target", "amdgcn-amd-amdhsa", "-mcpu=gfx950", "-c", "lay.s", "-o", "lay.o"], check=True)
    o = subprocess.run(["llvm-objdump", "-t", "lay.o"], capture_output=True, text=True).stdout
    return {m.group(2): int(m.group(1), 16) for m in re.finditer(r"^([0-9a-f]{16}) .*\.text\s+[0-9a-f]+ (?:\.\w+ )?(\S+)$", o, re.M)}

def build(out, align=True, shift=0, **kw):
    k, nv = gen(**kw)
    def full(pad):
        s = HEADER + "; @launch grid=(256,1,1) block=(512,1,1) lds=163840\n" + DOC
        s += '.amdgcn_target "amdgcn-amd-amdhsa--gfx950"\n.text\n'
        if align: s += ".p2align 12\n"
        s += kernel_start(NAME) + k.replace("PAD_HERE\n", f"    ; unreachable gap (s_endpgm words): keeps 4 KiB code-page crossings off the critical path\n.fill {pad}, 4, 0xbf810000\n" if pad else "")
        s += '.section .rodata,"a"\n' + kernel_desc(NAME, nv, 102)
        return s
    pad = 0
    if align:
        L = assemble_labels(full(0))
        c2 = L["L_C2"] - L[NAME]
        pad = (((-c2) % 4096) + shift) // 4
        L = assemble_labels(full(pad))
        print({n: hex(L[n] - L[NAME]) for n in ("L_NOFLAG", "L_PAD", "L_C", "L_NOLEAD2", "L_PN", "L_C2", "L_GO", "L_END")})
    open(out, "w").write(full(pad))
    print(out, "vgprs", nv)

if __name__ == "__main__":
    build("v27.s"); build("v27p.s", prof=1); build("v27_na.s", align=False); build("v27_bad.s", shift=2048+512)
```

```python
import sys, math
from asmlib import *
from gen_v3 import gelu8_pk, gelu8_sc

MB_BYTES = 86 * 1024
MBS = 88 * 1024
H_BYTES = 64 * MBS
C0 = -2.0 * math.sqrt(2.0 / math.pi) * math.log2(math.e)
C1 = C0 * 0.044715
NAME = "standalone__dense_activation_gelu__prompt_kernel"
SLOT = 28672
DBASE = 4 * SLOT
NST = 16
LIM = 0x100000

def w2_lds(pos):
    if pos == 10: pos = 0
    if pos < 3:
        return DBASE + pos * 16384
    return (pos - 3) * 16384

def grp(pos, kq):
    i = 4 * pos + kq
    p = (i >= 15) + (i >= 29)
    ft = i - (0, 15, 29)[p]
    return ft, p, 3 * ft + p
STG = [0]*3 + [1]*4 + [2]*4
def mask(kq, st):
    m = 0
    for pos in range(11):
        ft, p, g = grp(pos, kq)
        if STG[pos] == st and g < 43: m |= 1 << ft
    return m

class Cnt:
    def __init__(self): self.q = []
    def issue(self, tag, n=1): self.q += [tag] * n
    def need(self, tag):
        idx = max(i for i, t in enumerate(self.q) if t == tag)
        return len(self.q) - 1 - idx

def gen(prof=0, PF=8, psleep=2, lsp=(1,2,3,4), staged=False, f1at=4, cpf=False, p2at=9, LA=11, pre1=11, bat=0, early=5, ldel=0, late_st=False, rsplit=4, deep=True, prio2=None, bs_at=5, trot=0, npz=0, tthr=None, npoll=1, pgap=4, nfd=0, d14=0, rot='r2', lmall=True, oaux='sc1', bf=None, prioC=None):
    a = Asm(); stubs = Asm()
    SB = 70
    def stamp(i):
        if prof == 1 or (prof >= 3 and i == 0):
            a(f"s_memrealtime s[{SB+2*i}:{SB+2*i+1}]")
    def fstamp(i):
        if prof == 2:
            a(f"s_memrealtime s[{SB+2*i}:{SB+2*i+1}]")
    def gst(i, cyc=False):
        if prof == 4:
            a(f"{'s_memtime' if cyc else 's_memrealtime'} s[{SB+2*i}:{SB+2*i+1}]")
    def xst(i):
        if prof == 3:
            a(f"s_memrealtime s[{SB+2*i}:{SB+2*i+1}]")
    a("s_load_dwordx16 s[8:23], s[0:1], 0")
    stamp(0)
    if prof == 3:
        for i in range(2, 32): a(f"s_mov_b32 s{SB+i}, 0")
    a("s_cmp_ge_u32 s2, 256")
    a("s_cbranch_scc1 L_END")
    a("""v_lshrrev_b32 v2, 6, v0
    v_and_b32 v1, 63, v0
    s_and_b32 s3, s2, 7
    v_readfirstlane_b32 s7, v2
    s_bfe_u32 s4, s2, 0x30003
    s_lshr_b32 s5, s2, 6
    s_and_b32 s6, s3, 3
    s_lshl_b32 s30, s5, 2
    s_add_u32 s6, s6, s30
    s_lshr_b32 s24, s3, 2
    s_lshl_b32 s24, s24, 3
    s_add_u32 s24, s24, s4
    s_and_b32 s28, s7, 3
    v_and_b32 v2, 3, v2
    s_cmp_lt_u32 s7, 4
    s_cbranch_scc1 L_C""")
    vLane = 1; vQ = 2
    R = RegAlloc(3)
    t0 = R.alloc(); t1 = R.alloc(); t2 = R.alloc()
    vAW2 = R.alloc(12); vOH = R.alloc(); vOH2 = R.alloc(); vRW = R.alloc(2); vRR = R.alloc(2); vOO = R.alloc(); vN = R.alloc(); vNA = R.alloc(); vFA = R.alloc()
    vF = R.alloc(2); vD = R.alloc()
    vb2 = R.alloc(4, 4); vbf = R.alloc(8, 2)
    base = R.n
    R1 = RegAlloc(base)
    vAX = R1.alloc(8); vAW = R1.alloc(2); vFS = R1.alloc(); vFV = R1.alloc(3); vC0 = R1.alloc(2, 2)
    acc = R1.alloc(48, 4)
    fx = [R1.alloc(4, 4) for _ in range(3)]
    fw = [R1.alloc(12, 4) for _ in range(3)]
    T = R1.alloc(8, 4); O = [R1.alloc(4, 4) for _ in range(6)]
    RL = RegAlloc(base)
    vOX = RL.alloc(4); vOW = RL.alloc(3); vOW2 = RL.alloc(4)
    assert RL.n <= acc
    R2 = RegAlloc(R1.n)
    acc2 = R2.alloc(32, 4)
    fw2 = [R2.alloc(8, 4) for _ in range(2)]
    st0 = R2.alloc(16, 4)
    lastbuf = acc2
    R2b = RegAlloc(acc)
    fh = [R2b.alloc(4, 4) for _ in range(22)]
    assert R2b.n <= T
    nv = R2.n

    def common_setup():
        a("""s_add_u32 s30, s3, 1
        s_and_b32 s30, s30, 3
        s_lshl_b32 s30, s30, 1
        s_lshl_b32 s25, s5, 3
        s_add_u32 s25, s25, s30
        s_lshr_b32 s30, s3, 2
        s_add_u32 s25, s25, s30
        s_lshr_b32 s29, s7, 2
        s_lshl_b32 s26, s28, 12
        s_mul_i32 s27, s28, 11""")
        a(f"""v_lshrrev_b32 v{t0}, 5, v{vLane}
        v_lshlrev_b32 v{t0}, 4, v{t0}
        v_bfe_u32 v{t1}, v{vLane}, 2, 3
        v_add_u32 v{t0}, v{t0}, v{t1}
        v_lshlrev_b32 v{t0}, 7, v{t0}
        v_bfe_u32 v{t1}, v{vLane}, 3, 2
        v_lshl_add_u32 v{t0}, v{t1}, 5, v{t0}
        v_and_b32 v{t1}, 3, v{vLane}
        v_lshl_add_u32 v{t0}, v{t1}, 3, v{t0}
        v_lshl_add_u32 v{vAW2}, v{vQ}, 12, v{t0}
        v_xor_b32 v{vAW2+1}, 32, v{vAW2}
        v_xor_b32 v{vAW2+2}, 64, v{vAW2}
        v_xor_b32 v{vAW2+3}, 0x60, v{vAW2}
        v_add_u32 v{vAW2+4}, 65536, v{vAW2}
        v_add_u32 v{vAW2+5}, 65536, v{vAW2+1}
        v_add_u32 v{vAW2+6}, 65536, v{vAW2+2}
        v_add_u32 v{vAW2+7}, 65536, v{vAW2+3}
        v_add_u32 v{vAW2+8}, 131072, v{vAW2}
        v_add_u32 v{vAW2+9}, 131072, v{vAW2+1}
        v_add_u32 v{vAW2+10}, 131072, v{vAW2+2}
        v_add_u32 v{vAW2+11}, 131072, v{vAW2+3}
        v_lshrrev_b32 v{t0}, 4, v{vLane}
        v_lshlrev_b32 v{t0}, 9, v{t0}
        v_and_b32 v{t1}, 15, v{vLane}
        v_lshl_add_u32 v{vOH2}, v{t1}, 4, v{t0}
        v_lshlrev_b32 v{vOH}, 4, v{vLane}
        s_cmp_eq_u32 s29, 0
        s_cselect_b32 s30, {DBASE + 16384}, 0
        v_and_b32 v{t0}, 15, v{vLane}
        v_lshrrev_b32 v{t1}, 4, v{vLane}
        v_and_b32 v{t2}, 7, v{vLane}
        v_xor_b32 v{t1}, v{t1}, v{t2}
        v_lshlrev_b32 v{t1}, 4, v{t1}
        v_lshl_add_u32 v{t1}, v{t0}, 8, v{t1}
        v_lshl_add_u32 v{t1}, v{vQ}, 13, v{t1}
        v_add_u32 v{vRW}, s30, v{t1}
        v_xor_b32 v{vRW+1}, 64, v{vRW}
        v_lshrrev_b32 v{t0}, 3, v{vLane}
        v_lshlrev_b32 v{t1}, 1, v{t2}
        v_xor_b32 v{t1}, v{t1}, v{t0}
        v_lshlrev_b32 v{t1}, 4, v{t1}
        v_lshl_add_u32 v{t0}, v{vQ}, 3, v{t0}
        v_lshl_add_u32 v{t1}, v{t0}, 8, v{t1}
        v_add_u32 v{vRR}, s30, v{t1}
        v_xor_b32 v{vRR+1}, 16, v{vRR}
        v_lshlrev_b32 v{t2}, 4, v{t2}
        v_lshl_add_u32 v{vOO}, v{t0}, 10, v{t2}
        v_and_b32 v{t0}, 31, v{vLane}
        v_lshlrev_b32 v{vNA}, 2, v{t0}
        v_and_b32 v{vFA}, 15, v{vLane}
        v_lshlrev_b32 v{vFA}, 2, v{vFA}
        s_lshl_b32 s30, s25, 1
        s_add_u32 s30, s30, s29
        s_mul_i32 s68, s30, {MBS}
        s_lshl_b32 s69, s4, 7
        s_lshl_b32 s67, s30, 15
        s_add_u32 s67, s67, s69""")
    def goff(pos, shift, dst):
        a(f"s_add_u32 {dst}, s27, {pos}")
        a(f"s_lshl_b32 {dst}, {dst}, {shift}")
    def common_srds():
        a(f"""s_mov_b32 s40, s22
        s_mov_b32 s41, s23
        s_mov_b32 s42, {H_BYTES}
        s_mov_b32 s43, 0x20000
        s_mov_b32 s44, s20
        s_mov_b32 s45, s21
        s_mov_b32 s46, 256
        s_mov_b32 s47, 0x20000
        s_add_u32 s52, s18, s67
        s_addc_u32 s53, s19, 0
        s_sub_u32 s54, 2097152, s67
        s_mov_b32 s55, 0x20000""")
    def b2_load():
        a("""s_mov_b32 s32, s16
        s_mov_b32 s33, s17
        s_mov_b32 s34, 1024
        s_mov_b32 s35, 0x20000""")
        a(f"v_and_b32 v{t1}, 7, v{vLane}")
        a(f"v_lshlrev_b32 v{t1}, 4, v{t1}")
        a(f"buffer_load_dwordx4 {vr(vb2,4)}, v{t1}, s[32:35], s69 offen")
    def WS(pos):
        return [st0, fw2[0], O[0]][pos % 3] if deep else (st0 if pos % 2 == 0 else fw2[0])
    def wrd(pos):
        off = w2_lds(pos); k = off >> 16; off -= k << 16
        W = WS(pos)
        return [f"ds_read_b64_tr_b16 {vr(W+4*o+2*q,2)}, v{vAW2+4*k+o} offset:{off+q*1024}" for o in range(4) for q in range(2)]
    def stage0():
        for x in wrd(0): a(x)
    def ph2_scalars():
        a(f"s_add_u32 s63, s68, {MB_BYTES}")
        a("s_add_u32 s36, s22, s68")
        a("s_addc_u32 s37, s23, 0")
        a(f"s_mov_b32 s38, {MB_BYTES}")
        a("s_mov_b32 s39, 0x20000")
        a("s_lshl_b32 s31, s28, 4")
        a("s_mov_b32 s60, 0x00f8000f")
        a("s_mov_b32 s61, 0x78000780")
        a("s_lshr_b64 s[60:61], s[60:61], s31")
        a(f"s_and_b32 s56, s60, 0xffff")
    def acc2_zero():
        pass
    def acc2_bias():
        for i in range(4):
            a(f"v_lshlrev_b32 v{vbf+2*i}, 16, v{vb2+i}")
            a(f"v_and_b32 v{vbf+2*i+1}, 0xffff0000, v{vb2+i}")
    def poll_issue(k, o=a):
        o(f"buffer_load_dword v{vF+k}, v{vFA}, s[40:43], s63 offen sc1")
    def chk(k, st, o=a):
        lvl = st + 1 if staged else 3
        o(f"v_subrev_u32 v{vD}, s62, v{vF+k}")
        o(f"v_subrev_u32 v{vD}, {lvl}, v{vD}")
        o(f"v_cmp_ge_u32 vcc, {3-lvl}, v{vD}")
        o("s_nop 1")
        o(f"s_and_b32 s31, vcc_lo, s{56+st}")
        o(f"s_cmp_eq_u32 s31, s{56+st}")

    a.c("loader waves")
    a({"r2": """s_add_u32 s62, s5, s4
    s_and_b32 s62, s62, 1
    s_lshl_b32 s62, s62, 2
    s_lshr_b32 s30, s3, 2
    s_add_u32 s30, s30, s3
    s_and_b32 s30, s30, 1
    s_lshl_b32 s30, s30, 1
    s_add_u32 s62, s62, s30""",
       "none": "s_mov_b32 s62, 4",
       "xcd": "s_mov_b32 s62, s3",
       "cu": "s_lshl_b32 s62, s5, 1\ns_add_u32 s62, s62, s4\ns_and_b32 s62, s62, 7",
       "r2b": "s_add_u32 s62, s5, s4\ns_and_b32 s62, s62, 1\ns_lshl_b32 s62, s62, 2\ns_add_u32 s62, s62, s3\ns_and_b32 s62, s62, 7",
       "r4": "s_add_u32 s62, s5, s4\ns_and_b32 s62, s62, 3\ns_lshl_b32 s62, s62, 1",
       "r1": "s_add_u32 s62, s5, s4\ns_and_b32 s62, s62, 1\ns_add_u32 s62, s62, 4",
       }[rot])
    a(f"""v_lshrrev_b32 v{t0}, 3, v{vLane}
    v_lshl_add_u32 v{t0}, v{vQ}, 5, v{t0}
    v_lshlrev_b32 v{t0}, 10, v{t0}
    v_lshrrev_b32 v{t1}, 4, v{vLane}
    v_and_b32 v{t2}, 7, v{vLane}
    v_xor_b32 v{t1}, v{t1}, v{t2}
    v_lshl_add_u32 v{vOX}, v{t1}, 4, v{t0}
    v_xor_b32 v{t1}, 4, v{t1}
    v_lshl_add_u32 v{vOX+1}, v{t1}, 4, v{t0}
    v_add_u32 v{vOX+1}, {8192-1024}, v{vOX+1}
    v_add_u32 v{vOX+2}, {2*(8192-1024)}, v{vOX}
    v_add_u32 v{vOX+3}, {2*(8192-1024)}, v{vOX+1}
    v_mul_u32_u24 v{t0}, 192, v{vQ}
    v_add_u32 v{t0}, v{t0}, v{vLane}""")
    for j in range(3):
        if j:
            a(f"v_add_u32 v{t0}, 64, v{t0}")
        a(f"v_mul_u32_u24 v{t1}, 43691, v{t0}")
        a(f"v_lshrrev_b32 v{t1}, 19, v{t1}")
        a(f"v_mul_u32_u24 v{t2}, 12, v{t1}")
        a(f"v_sub_u32 v{t2}, v{t0}, v{t2}")
        a(f"v_mul_u32_u24 v{t1}, 2752, v{t1}")
        a(f"v_lshl_add_u32 v{vOW+j}, v{t2}, 4, v{t1}")
        if j:
            a(f"v_subrev_u32 v{vOW+j}, {1024*j}, v{vOW+j}")
    a("""s_lshl_b32 s56, s28, 12
    s_mul_i32 s57, s28, 3072
    s_add_u32 s57, s57, 16384
    s_mul_i32 s58, s24, 192
    s_lshl_b32 s59, s6, 17
    s_sub_u32 s38, 1409024, s58
    s_cmp_eq_u32 s24, 15
    s_cselect_b32 s38, 0, s38
    s_cselect_b32 s34, 0, 131072
    s_mov_b32 s35, 0x20000
    s_mov_b32 s39, 0x20000
    s_waitcnt lgkmcnt(0)""")
    stamp(1); xst(1)
    a("""s_add_u32 s32, s8, s59
    s_addc_u32 s33, s9, 0
    s_add_u32 s36, s10, s58
    s_addc_u32 s37, s11, 0""")
    items = []
    for c in range(8):
        slot = c % 4
        for j in range(7):
            l = []
            if j == 0:
                l += [f"s_add_u32 m0, s56, {slot*SLOT}", "s_lshl_b32 s63, s62, 7"]
            if j == 4:
                l += [f"s_add_u32 m0, s57, {slot*SLOT}", "s_mul_i32 s63, s62, 176128", "s_add_u32 s62, s62, 1", "s_and_b32 s62, s62, 7"]
            if j < 4: l.append(f"buffer_load_dwordx4 v{vOX+j}, s[32:35], s63 offen offset:{1024*j} lds")
            else: l.append(f"buffer_load_dwordx4 v{vOW+j-4}, s[36:39], s63 offen offset:{1024*(j-4)} lds")
            items.append((l, f"c{c}", c - 3))
    W2B = {0: -9, 1: -9, 2: -9, 3: 5, 4: 6, 5: 6, 6: 7, 7: 7}
    for pos in range(early):
        for j in range(4):
            items.append((("W2", pos, j), f"p{pos}", W2B[pos]))
    vmL = Cnt(); ptr = [0]
    def emit(n, bar):
        while ptr[0] < min(n, len(items)) and items[ptr[0]][2] <= bar:
            l, tag, _ = items[ptr[0]]
            if l[0] == "W2":
                _, pos, j = l
                if j == 0:
                    a(f"s_add_u32 m0, s26, {w2_lds(pos)}")
                    goff(pos, 15, "s66")
                a(f"buffer_load_dwordx4 v{vOW2+j}, s[48:51], s66 offen offset:{1024*j} lds")
            else:
                for x in l: a(x)
            vmL.issue(tag); ptr[0] += 1
    def dma2(pos):
        a(f"s_add_u32 m0, s26, {w2_lds(pos)}")
        goff(pos, 15, "s66")
        for j in range(4):
            a(f"buffer_load_dwordx4 v{vOW2+j}, s[48:51], s66 offen offset:{1024*j} lds")
    emit(pre1, -1); xst(2)
    common_setup()
    common_srds()
    a(f"""v_lshrrev_b32 v{t0}, 3, v{vLane}
    v_bfe_u32 v{t1}, v{vLane}, 4, 2
    v_lshlrev_b32 v{t1}, 1, v{t1}
    v_and_b32 v{t2}, 7, v{vLane}
    v_xor_b32 v{t1}, v{t1}, v{t2}
    v_lshlrev_b32 v{t0}, 10, v{t0}
    v_lshl_add_u32 v{vOW2}, v{t1}, 4, v{t0}""")
    for j in range(1, 4):
        a(f"v_add_u32 v{vOW2+j}, {j*(8192-1024)}, v{vOW2}")
    a("""s_lshl_b32 s30, s4, 7
    s_add_u32 s48, s14, s30
    s_addc_u32 s49, s15, 0
    s_sub_u32 s50, 1409024, s30
    s_mov_b32 s51, 0x20000""")
    if lsp:
        a("""s_lshl_b32 s30, s2, 2
        s_add_u32 s30, s30, s28
        s_mul_i32 s30, s30, 1376
        s_and_b32 s30, s30, 0xffffffc0
        s_add_u32 s58, s14, s30
        s_addc_u32 s59, s15, 0
        s_lshr_b32 s30, s2, 3
        s_mul_i32 s30, s30, 43
        s_mul_i32 s31, s28, 11
        s_add_u32 s30, s30, s31
        s_min_u32 s30, s30, 1365
        s_lshl_b32 s30, s30, 10
        s_add_u32 s60, s14, s30
        s_addc_u32 s61, s15, 0""")
        lds_ = []
        for i in range(22):
            lds_.append(f"s_load_dword s31, s[60:61], {(i//2)*1024+384+(i&1)*64}")
            if lmall: lds_.append(f"s_load_dword s31, s[58:59], {min(i*64, 1372)}")
        per = (len(lds_) + len(lsp) - 1) // len(lsp)
    xst(3)
    for i in range(8):
        la = LA[i] if isinstance(LA, (list, tuple)) else LA
        emit(7 * (i + 1) + la, i - 1)
        fstamp(2*i)
        a(f"s_waitcnt vmcnt({vmL.need(f'c{i}')})")
        fstamp(2*i+1)
        if i == 0: xst(4)
        a("s_barrier")
        if i == 0: stamp(2)
        if i == 7: stamp(3)
        if lsp and i in lsp:
            for x in lds_[lsp.index(i)*per:(lsp.index(i)+1)*per]: a(x)
    emit(999, 7)
    b2_load()
    stamp(4)
    a("s_waitcnt lgkmcnt(0)")
    if npz:
        a(f"s_add_u32 s30, s27, {early}")
        a("s_lshl_b32 s30, s30, 5")
        a("s_lshr_b32 s31, s2, 3")
        a(f"s_mul_i32 s31, s31, {(npz+15)//16}")
        a("s_add_u32 s30, s30, s31")
        a("s_min_u32 s30, s30, 1368")
        a("s_lshl_b32 s30, s30, 10")
        a("s_add_u32 s64, s14, s30")
        a("s_addc_u32 s65, s15, 0")
    a(f"buffer_load_dword v{vN}, v{vNA}, s[44:47], 0 offen sc1")
    ph2_scalars()
    for i in range(npz): a(f"s_load_dword s59, s[64:65], {i*64}")
    acc2_zero()
    a("s_waitcnt vmcnt(0)")
    acc2_bias()
    stage0()
    stamp(5); xst(12)
    a("s_barrier")
    stamp(6)
    if ldel: a(f"s_sleep {ldel}")
    if trot:
        n = 10 - early
        a(f"s_mul_i32 s64, s5, {trot}")
        for k in range(n):
            a(f"s_cmp_ge_u32 s64, {n}")
            a(f"s_cselect_b32 s65, {n}, 0")
            a("s_sub_u32 s64, s64, s65")
            a("s_lshl_b32 s65, s64, 14")
            a("s_add_u32 s65, s65, s26")
            a(f"s_add_u32 m0, s65, {w2_lds(early)}")
            a("s_add_u32 s66, s64, s27")
            a(f"s_add_u32 s66, s66, {early}")
            a("s_lshl_b32 s66, s66, 15")
            for j in range(4):
                a(f"buffer_load_dwordx4 v{vOW2+j}, s[48:51], s66 offen offset:{1024*j} lds")
            a("s_add_u32 s64, s64, 1")
    else:
        for pos in range(early, 10):
            if tthr is not None and pos > early: a(f"s_waitcnt vmcnt({tthr})")
            dma2(pos)
    poll_issue(0)
    a("s_waitcnt lgkmcnt(0)")
    a("s_barrier")
    dma2(10)
    poll_issue(1)
    a("s_waitcnt vmcnt(5)")
    a("s_branch L_PHASE2")

    a.label("L_NOFLAG")
    a("s_waitcnt vmcnt(0) lgkmcnt(0)")
    a("s_barrier")
    stage0()
    acc2_zero(); acc2_bias()
    a("s_branch L_C2")
    a.raw("STUBS_HERE")
    a.label("L_PAD")
    a.raw("PAD_HERE")
    a.label("L_C")
    xst(5)
    common_setup()
    a(f"""v_and_b32 v{t0}, 31, v{vLane}
    v_lshrrev_b32 v{t1}, 1, v{t0}
    v_and_b32 v{t1}, 7, v{t1}
    v_lshrrev_b32 v{t2}, 5, v{vLane}
    v_xor_b32 v{t1}, v{t1}, v{t2}
    v_lshlrev_b32 v{t0}, 7, v{t0}
    v_lshl_add_u32 v{t0}, v{vQ}, 12, v{t0}""")
    for t in range(4):
        a(f"v_xor_b32 v{vAX+t}, {2*t}, v{t1}")
        a(f"v_lshl_add_u32 v{vAX+t}, v{vAX+t}, 4, v{t0}")
        a(f"v_add_u32 v{vAX+4+t}, {2*SLOT}, v{vAX+t}")
    bA = acc2; bB = acc2 + 4
    for i in range(12): a(f"v_mov_b32 v{bB+i}, 0")
    a(f"""v_mov_b32 v{bA+2}, 0
    v_mov_b32 v{bA+3}, 0
    v_mul_u32_u24 v{bB+4}, 0x3f80, v{t2}
    v_xor_b32 v{bB}, 0x3f80, v{bB+4}
    v_mov_b32 v{bB+9}, v{bB}
    v_lshlrev_b32 v{t1}, 3, v{t2}
    v_bfe_u32 v{t0}, v{vLane}, 2, 2
    v_add_u32 v{t0}, v{t0}, v{t1}
    v_mul_u32_u24 v{t0}, 192, v{t0}
    v_bfe_u32 v{t1}, v{vLane}, 4, 1
    v_lshl_add_u32 v{t0}, v{t1}, 5, v{t0}
    v_and_b32 v{t1}, 3, v{vLane}
    v_lshl_add_u32 v{t0}, v{t1}, 3, v{t0}
    v_add_u32 v{vAW}, 16384, v{t0}
    v_add_u32 v{vAW+1}, {2*SLOT+16384}, v{t0}
    v_mov_b32 v{vC0}, 0x{f32bits(C0):08x}
    v_mov_b32 v{vC0+1}, 0x{f32bits(C0):08x}
    s_mov_b32 s48, 0x{f32bits(C1):08x}
    s_mov_b32 s49, 0x{f32bits(C1):08x}
    v_bfe_u32 v{t0}, v{vLane}, 4, 1
    v_mul_u32_u24 v{t0}, {MBS}, v{t0}
    v_add_u32 v{t0}, v{t0}, v{vFA}
    v_lshlrev_b32 v{t2}, 1, v{vLane}
    v_lshlrev_b32 v{vFS}, 24, v{vLane}
    s_mul_i32 s58, s24, 192
    s_lshl_b32 s59, s6, 2
    s_add_u32 s59, s59, s7
    s_mul_i32 s62, s59, {MBS}
    s_mul_i32 s61, s24, 6144
    s_add_u32 s50, s62, s61
    s_add_u32 s51, s50, 4096
    s_lshl_b32 s63, s24, 2
    s_add_u32 s62, s62, s63
    s_add_u32 s66, s62, {MB_BYTES}
    s_mul_i32 s63, s25, {2*MBS}
    s_add_u32 s63, s63, {MB_BYTES}
    s_lshr_b32 s59, s59, 1
    s_waitcnt lgkmcnt(0)""")
    stamp(1); xst(6)
    a(f"""s_mov_b32 s32, s12
    s_mov_b32 s33, s13
    s_mov_b32 s34, 2752
    s_mov_b32 s35, 0x20000
    buffer_load_ushort v{bA}, v{t2}, s[32:35], s58 offen
    buffer_load_ushort v{bA+1}, v{t2}, s[32:35], s58 offen offset:128""")
    common_srds()
    a(f"""s_or_b32 s61, s4, s7
    s_cmp_lg_u32 s61, 0
    s_cbranch_scc1 L_NOLEAD
    buffer_load_dword v{vF}, v{t0}, s[40:43], s63 offen sc1
    v_bfe_u32 v{t1}, v{vLane}, 4, 1
    v_sub_u32 v{t1}, v{vLane}, v{t1}
    v_add_u32 v{t1}, 2, v{t1}
    s_nop 0""")
    a.label("L_NOLEAD")
    xst(7)
    def lead2():
        a(f"""s_or_b32 s61, s4, s7
        s_cmp_lg_u32 s61, 0
        s_cbranch_scc1 L_NOLEAD2
        v_bfe_u32 v{t1}, v{vLane}, 4, 1
        v_sub_u32 v{t1}, v{vLane}, v{t1}
        v_add_u32 v{t1}, 2, v{t1}
        v_lshrrev_b32 v{t1}, v{t1}, v{vF}
        v_and_b32 v{t1}, 1, v{t1}
        v_cmp_eq_u32 vcc, 0, v{t1}
        s_lshl_b32 s30, s25, 2
        s_nop 0
        s_and_b32 s31, vcc_lo, 0x7fff
        s_lshl_b32 s31, s31, 2
        s_and_b32 s61, vcc_lo, 0x7fff0000
        s_lshl_b32 s61, s61, 1
        s_or_b32 s31, s31, s61
        s_or_b32 s31, s31, 1
        v_mov_b32 v{t1}, s31
        buffer_store_dword v{t1}, v{vFS}, s[44:47], s30 offen sc1""")
        a.label("L_NOLEAD2")
    ph2_scalars()
    a("s_mov_b32 s67, 0")
    def rd(c, t, s):
        slot = c % 4
        hi = slot >> 1; off = (slot & 1) * SLOT
        l = [f"ds_read_b128 {vr(fx[s],4)}, v{vAX+4*hi+t} offset:{off}"]
        for p in range(3):
            for q in range(2):
                l.append(f"ds_read_b64_tr_b16 {vr(fw[s]+4*p+2*q,2)}, v{vAW+hi} offset:{off+t*3072+q*768+p*64}")
        return l
    def mf(s, z=False):
        return [f"v_mfma_f32_32x32x16_bf16 {vr(acc+16*p,16)}, {vr(fw[s]+4*p,4)}, {vr(fx[s],4)}, {'0' if z else vr(acc+16*p,16)}" for p in range(3)]
    def inter(m, r):
        for x in [m[0], r[0], r[1], r[2], m[1], r[3], r[4], m[2], r[5], r[6]]:
            a(x)
    vm = Cnt()
    def hstore(idx):
        so = "s50" if idx < 4 else "s51"
        if idx == 5: gst(8)
        if late_st:
            if idx < 5:
                gst(2 + idx); return
            for k in range(5):
                a(f"buffer_store_dwordx4 {vr(O[k],4)}, v{vOH}, s[40:43], {'s50' if k < 4 else 's51'} offen offset:{(k%4)*1024} sc1")
        a(f"buffer_store_dwordx4 {vr(O[idx],4)}, v{vOH}, s[40:43], {so} offen offset:{(idx%4)*1024} sc1")
        vm.issue(f"st{idx}")
        gst(2 + idx)
        if idx == 5: gst(10, True)
    def flag(lvl):
        a(f"buffer_store_dword v{vFV+lvl-1}, v{vFS}, s[40:43], s66 offen sc1")
        vm.issue(f"f{lvl}")
    xst(8)
    for c in range(7):
        fstamp(2*c)
        a("s_barrier")
        fstamp(2*c+1)
        if c == 0: stamp(2)
        if c == 5:
            a(f"buffer_load_dword v{vN}, v{vNA}, s[44:47], 0 offen sc1")
            b2_load()
        for x in rd(c, 0, (4*c) % 3): a(x)
        if c >= 1:
            inter(mf((4*c - 1) % 3), rd(c, 1, (4*c+1) % 3))
        else:
            for x in rd(c, 1, (4*c+1) % 3): a(x)
        a("s_waitcnt lgkmcnt(7)")
        inter(mf((4*c) % 3, c == 0), rd(c, 2, (4*c+2) % 3))
        a("s_waitcnt lgkmcnt(7)")
        inter(mf((4*c+1) % 3), rd(c, 3, (4*c+3) % 3))
        a("s_waitcnt lgkmcnt(7)")
        for x in mf((4*c+2) % 3): a(x)
        if c == bat:
            a("s_waitcnt vmcnt(0)")
            for p in range(3):
                a(f"v_mfma_f32_32x32x16_bf16 {vr(acc+16*p,16)}, {vr(bA,4)}, {vr(bB+4*p,4)}, {vr(acc+16*p,16)}")
            lead2()
        a("s_waitcnt lgkmcnt(0)")
        if c == 6:
            for x in mf(27 % 3): a(x)
    fstamp(14)
    a("s_barrier")
    fstamp(15); gst(12); gst(13, True)
    stamp(3)
    LX = lambda t: lastbuf + 4*t
    LW = lambda p, t: lastbuf + 16 + 16*p + 4*t
    def rx(t): return f"ds_read_b128 {vr(LX(t),4)}, v{vAX+4+t} offset:{SLOT}"
    def rw(p, t): return [f"ds_read_b64_tr_b16 {vr(LW(p,t)+2*q,2)}, v{vAW+1} offset:{SLOT+t*3072+q*768+p*64}" for q in range(2)]
    def m(p, t): return f"v_mfma_f32_32x32x16_bf16 {vr(acc+16*p,16)}, {vr(LW(p,t),4)}, {vr(LX(t),4)}, {vr(acc+16*p,16)}"
    for t in range(4):
        a(rx(t))
        for x in rw(0, t): a(x)
    a("s_waitcnt lgkmcnt(9)"); a(m(0, 0))
    for x in rw(1, 0) + rw(1, 1): a(x)
    a("s_waitcnt lgkmcnt(10)"); a(m(0, 1))
    for x in rw(1, 2) + rw(1, 3): a(x)
    a("s_waitcnt lgkmcnt(11)"); a(m(0, 2))
    for x in rw(2, 0) + rw(2, 1): a(x)
    a("s_waitcnt lgkmcnt(12)"); a(m(0, 3))
    for x in rw(2, 2): a(x)
    a("s_waitcnt lgkmcnt(12)"); a(m(1, 0))
    for x in rw(2, 3): a(x)
    a("s_waitcnt lgkmcnt(8)"); a(m(1, 1))
    stamp(4); xst(9); gst(1); gst(9, True)
    a("s_cmp_eq_u32 s24, 15")
    a("s_cbranch_scc1 L_NOFLAG")
    a("s_nop 1")
    rest = [m(1, 2), m(1, 3), "W0", m(2, 0), m(2, 1), m(2, 2), m(2, 3)]
    cost = 0; nxt = 24
    for ins in gelu8_sc(acc, T, O[0], 48, vC0):
        a(ins)
        cost += 8 if ("exp" in ins or "rcp" in ins) else 4
        if cost >= nxt and rest:
            x = rest.pop(0)
            if x == "W0":
                a("s_waitcnt lgkmcnt(0)"); x = rest.pop(0)
            a(x); nxt = cost + 24
    assert not rest
    hstore(0)
    for ins in gelu8_pk(acc + 8, T, O[1], 48, vC0): a(ins)
    hstore(1)
    a("s_waitcnt vmcnt(0)" if late_st else "s_waitcnt vmcnt(2)")
    a.label("L_PN")
    a(f"v_readlane_b32 s31, v{vN}, s59")
    a("s_add_u32 s67, s67, 1")
    a("s_nop 1")
    a("s_cmp_eq_u32 s31, 0")
    a("s_cbranch_scc1 L_PN_RETRY")
    a.label("L_PN_OK")
    stubs.label("L_PN_RETRY")
    stubs(f"s_cmp_gt_u32 s67, {LIM}")
    stubs("s_cbranch_scc1 L_PN_OK")
    stubs("s_sleep 16")
    stubs(f"buffer_load_dword v{vN}, v{vNA}, s[44:47], 0 offen sc1")
    stubs("s_waitcnt vmcnt(0)")
    stubs("s_branch L_PN")
    a(f"v_mov_b32 v{vFV}, s31")
    a(f"v_add_u32 v{vFV+1}, 1, v{vFV}")
    a(f"v_add_u32 v{vFV+2}, 2, v{vFV}")
    a("s_cmp_eq_u32 s24, 14")
    a("s_cbranch_scc1 L_ST14")
    stubs.label("L_ST14")
    if d14: stubs(f"s_sleep {d14}")
    stubs("s_barrier")
    stubs("s_branch L_LASTF")
    for idx in range(2, 6):
        for ins in gelu8_pk(acc + 8*idx, T, O[idx], 48, vC0): a(ins)
        hstore(idx)
        if idx == bs_at: a("s_barrier")
        if staged and idx == f1at:
            a(f"s_waitcnt vmcnt({vm.need('st1')})")
            flag(1)
    stamp(5); xst(10)
    if staged:
        a(f"s_waitcnt vmcnt({vm.need('st3')})")
        flag(2)
    a.label("L_LASTF")
    stage0()
    acc2_zero(); acc2_bias()
    a(f"s_waitcnt vmcnt(0)")
    stamp(6); xst(11); gst(11)
    flag(3)
    a.label("L_C2")
    poll_issue(1)
    a(f"v_mov_b32 v{vF}, 0")
    a("s_waitcnt lgkmcnt(0)")
    a("s_barrier")

    a.label("L_PHASE2")
    stamp(7)
    a("s_mov_b32 s67, 0")
    a.label("L_CN")
    a(f"v_readlane_b32 s62, v{vN}, s25")
    a("s_add_u32 s67, s67, 1")
    a("s_nop 1")
    a("s_cmp_eq_u32 s62, 0")
    a("s_cbranch_scc1 L_CN_RETRY")
    a.label("L_CN_OK")
    stubs.label("L_CN_RETRY")
    stubs(f"s_cmp_gt_u32 s67, {LIM}")
    stubs("s_cbranch_scc1 L_CN_OK")
    stubs("s_sleep 16")
    stubs(f"buffer_load_dword v{vN}, v{vNA}, s[44:47], 0 offen sc1")
    stubs("s_waitcnt vmcnt(0)")
    stubs("s_branch L_CN")
    a("s_sub_u32 s62, s62, 1")
    chk(0, 0)
    a("s_cbranch_scc1 L_GO")
    if npoll == 1:
        a.label("L_POLL")
        a(f"s_waitcnt vmcnt(0)")
        chk(1, 0)
        a("s_cbranch_scc1 L_GO")
        a("s_add_u32 s67, s67, 1")
        if psleep: a(f"s_sleep {psleep}")
        poll_issue(1)
        a(f"s_cmp_le_u32 s67, {LIM}")
        a("s_cbranch_scc1 L_POLL")
    else:
        order = list(range(1, npoll + 1))
        for k in order[1:]:
            poll_issue(k)
            if k != order[-1]: a(f"s_sleep {pgap}")
        a.label("L_POLL")
        for k in order:
            a(f"s_waitcnt vmcnt({npoll-1})")
            chk(k, 0)
            a("s_cbranch_scc1 L_GO")
            if psleep: a(f"s_sleep {psleep}")
            poll_issue(k)
        a("s_add_u32 s67, s67, 1")
        a(f"s_cmp_le_u32 s67, {LIM}")
        a("s_cbranch_scc1 L_POLL")
    a.label("L_GO")
    stamp(8)
    vm = Cnt(); lg = Cnt()
    def hload(s):
        if s % 2 == 0: goff(s >> 1, 11, "s66")
        a(f"buffer_load_dwordx4 {vr(fh[s],4)}, v{vOH2}, s[36:39], s66 offen offset:{(s&1)*256} sc1")
        vm.issue(f"h{s}")
    if prioC is not None:
        a("s_cmp_ge_u32 s7, 4")
        a("s_cbranch_scc1 L_NOPRIOC")
        a(f"s_setprio {prioC}")
        a.label("L_NOPRIOC")
    if prio2 is not None:
        a("s_cmp_lt_u32 s7, 4")
        a("s_cbranch_scc1 L_NOPRIO")
        a(f"s_setprio {prio2}")
        a.label("L_NOPRIO")
    for s in range(PF): hload(s)
    D = 2 if deep else 1
    if deep:
        for x in wrd(1): a(x)
        lg.issue("w1", 8)
    for s in range(22):
        pos = s >> 1; mi = s & 1
        assert early == 5
        if mi == 0 and pos + D == early:
            a("s_waitcnt lgkmcnt(0)")
            a("s_barrier")
        w = f"s_waitcnt vmcnt({vm.need(f'h{s}')})"
        if mi == 0 and pos >= 1: w += f" lgkmcnt({lg.need(f'w{pos}')})"
        a(w)
        if bf is not None and s == bf:
            a("s_cmp_eq_u32 s29, 0")
            a("s_cbranch_scc1 L_NOBF")
            a("s_barrier")
            a.label("L_NOBF")
        if s == 0: stamp(9)
        if s == 21: stamp(10)
        W = WS(pos)
        r = wrd(pos + D) if pos + D <= 10 else []
        r = (r[:rsplit] if mi == 0 else r[rsplit:])
        per_ = (len(r) + 3) // 4
        for o in range(4):
            ac = vr(acc2 + 8*o + 4*mi, 4)
            a(f"v_mfma_f32_16x16x32_bf16 {ac}, {vr(W+4*o,4)}, {vr(fh[s],4)}, {'0' if pos == 0 else ac}")
            for x in r[per_*o:per_*o+per_]:
                a(x); lg.issue(f"w{pos+D}")
        if s + PF < 22: hload(s + PF)
    stamp(11)
    for mi in range(2):
        if mi == 1: a("s_nop 0")
        for o in range(4):
            a(f"ds_write_b128 v{vRW+(o&1)}, {vr(acc2+8*o+4*mi,4)} offset:{(o>>1)*128+mi*4096}")
    a("s_waitcnt lgkmcnt(0)")
    a("s_barrier")
    stamp(12)
    rdm = fh[0]
    for k in range(4):
        for e in range(2):
            a(f"ds_read_b128 {vr(rdm+8*k+4*e,4)}, v{vRR+e} offset:{k*8192}")
    for k in range(4):
        a(f"s_waitcnt lgkmcnt({6-2*k})")
        for i in range(0, 8, 2):
            a(f"v_pk_add_f32 {vr(vbf+i,2)}, {vr(vbf+i,2)}, {vr(rdm+8*k+i,2)}")
    od = fw2[0]
    for i in range(4):
        a(f"v_cvt_pk_bf16_f32 v{od+i}, v{vbf+2*i}, v{vbf+2*i+1}")
    a(f"buffer_store_dwordx4 {vr(od,4)}, v{vOO}, s[52:55], 0 offen {oaux}")
    if bf is not None:
        a("s_cmp_lg_u32 s29, 0")
        a("s_cbranch_scc1 L_NOBF2")
        a("s_barrier")
        a.label("L_NOBF2")
    if prof:
        stamp(13)
        a("s_waitcnt vmcnt(0)")
        stamp(14)
        a("s_waitcnt lgkmcnt(0)")
        if prof != 2:
            a(f"s_mov_b32 s{SB+30}, s67")
            a(f"s_mov_b32 s{SB+31}, 0")
        a(f"s_add_u32 s44, s22, {128<<20}")
        a(f"s_addc_u32 s45, s23, 0")
        a("s_mov_b32 s46, 0x1000000")
        a("s_mov_b32 s47, 0x20000")
        a("s_lshl_b32 s48, s2, 3")
        a("s_add_u32 s48, s48, s7")
        a(f"s_mul_i32 s48, s48, {NST*8}")
        a("v_mov_b32 v1, 0")
        for i in range(NST):
            a(f"v_mov_b32 v2, s{SB+2*i}")
            a(f"v_mov_b32 v3, s{SB+2*i+1}")
            a(f"buffer_store_dwordx2 v[2:3], v1, s[44:47], s48 offen offset:{8*i}")
            a("s_nop 1")
    a.label("L_END")
    a("s_endpgm")
    return a.text().replace('STUBS_HERE\n', stubs.text()), nv

DOC = """; ---------------------------------------------------------------------------------------------
;           gelu = x / (1 + exp2(x*(c0 + c1*x^2))) in fp32 and store bf16 h to d_ws in MFMA
; ---------------------------------------------------------------------------------------------
"""
def assemble_labels(text):
    import subprocess, re
    open("lay.s", "w").write(text)
    subprocess.run(["clang", "-x", "assembler", "-target", "amdgcn-amd-amdhsa", "-mcpu=gfx950", "-c", "lay.s", "-o", "lay.o"], check=True)
    o = subprocess.run(["llvm-objdump", "-t", "lay.o"], capture_output=True, text=True).stdout
    return {m.group(2): int(m.group(1), 16) for m in re.finditer(r"^([0-9a-f]{16}) .*\.text\s+[0-9a-f]+ (?:\.\w+ )?(\S+)$", o, re.M)}

def build(out, align=True, shift=0, **kw):
    k, nv = gen(**kw)
    def full(pad):
        s = HEADER + "; @launch grid=(256,1,1) block=(512,1,1) lds=163840\n" + DOC
        s += '.amdgcn_target "amdgcn-amd-amdhsa--gfx950"\n.text\n'
        if align: s += ".p2align 12\n"
        s += kernel_start(NAME) + k.replace("PAD_HERE\n", f"    ; unreachable gap (s_endpgm words): keeps 4 KiB code-page crossings off the critical path\n.fill {pad}, 4, 0xbf810000\n" if pad else "")
        s += '.section .rodata,"a"\n' + kernel_desc(NAME, nv, 102)
        return s
    pad = 0
    if align:
        L = assemble_labels(full(0))
        c2 = L["L_C2"] - L[NAME]
        pad = (((-c2) % 4096) + shift) // 4
        L = assemble_labels(full(pad))
        print({n: hex(L[n] - L[NAME]) for n in ("L_NOFLAG", "L_PAD", "L_C", "L_NOLEAD2", "L_PN", "L_C2", "L_GO", "L_END")})
    open(out, "w").write(full(pad))
    print(out, "vgprs", nv)

if __name__ == "__main__":
    build("v33.s")
    for b in (16, 18, 20): build(f"v33_bf{b}.s", bf=b)
    build("v33_bf18p.s", bf=18, prioC=1); build("v33_bf14p.s", bf=14, prioC=1)
```

```python
import sys, math
from asmlib import *
from gen_v3 import gelu8_pk, gelu8_sc

MB_BYTES = 86 * 1024
MBS = 88 * 1024
H_BYTES = 64 * MBS
C0 = -2.0 * math.sqrt(2.0 / math.pi) * math.log2(math.e)
C1 = C0 * 0.044715
NAME = "standalone__dense_activation_gelu__prompt_kernel"
SLOT = 28672
DBASE = 4 * SLOT
NST = 16
LIM = 0x100000

def w2_lds(pos):
    if pos == 10: pos = 0
    if pos < 3:
        return DBASE + pos * 16384
    return (pos - 3) * 16384

def grp(pos, kq):
    i = 4 * pos + kq
    p = (i >= 15) + (i >= 29)
    ft = i - (0, 15, 29)[p]
    return ft, p, 3 * ft + p
STG = [0]*3 + [1]*4 + [2]*4
def mask(kq, st):
    m = 0
    for pos in range(11):
        ft, p, g = grp(pos, kq)
        if STG[pos] == st and g < 43: m |= 1 << ft
    return m

class Cnt:
    def __init__(self): self.q = []
    def issue(self, tag, n=1): self.q += [tag] * n
    def need(self, tag):
        idx = max(i for i, t in enumerate(self.q) if t == tag)
        return len(self.q) - 1 - idx

def gen(prof=0, PF=8, psleep=2, lsp=(1,2,3,4), staged=False, f1at=4, cpf=False, p2at=9, LA=11, pre1=11, bat=0, early=5, ldel=0, late_st=False, rsplit=4, deep=True, prio2=None, bs_at=5, trot=0, npz=0, tthr=None, npoll=1, pgap=4, nfd=0, d14=0, rot='r2', lmall=True, oaux='sc1', bf=None, prioC=None):
    a = Asm(); stubs = Asm()
    SB = 70
    def stamp(i):
        if prof == 1 or (prof >= 3 and i == 0):
            a(f"s_memrealtime s[{SB+2*i}:{SB+2*i+1}]")
    def fstamp(i):
        if prof == 2:
            a(f"s_memrealtime s[{SB+2*i}:{SB+2*i+1}]")
    def gst(i, cyc=False):
        if prof == 4:
            a(f"{'s_memtime' if cyc else 's_memrealtime'} s[{SB+2*i}:{SB+2*i+1}]")
    def xst(i):
        if prof == 3:
            a(f"s_memrealtime s[{SB+2*i}:{SB+2*i+1}]")
    a("s_load_dwordx16 s[8:23], s[0:1], 0")
    stamp(0)
    if prof == 3:
        for i in range(2, 32): a(f"s_mov_b32 s{SB+i}, 0")
    a("s_cmp_ge_u32 s2, 256")
    a("s_cbranch_scc1 L_END")
    a("""v_lshrrev_b32 v2, 6, v0
    v_and_b32 v1, 63, v0
    s_and_b32 s3, s2, 7
    v_readfirstlane_b32 s7, v2
    s_bfe_u32 s4, s2, 0x30003
    s_lshr_b32 s5, s2, 6
    s_and_b32 s6, s3, 3
    s_lshl_b32 s30, s5, 2
    s_add_u32 s6, s6, s30
    s_lshr_b32 s24, s3, 2
    s_lshl_b32 s24, s24, 3
    s_add_u32 s24, s24, s4
    s_and_b32 s28, s7, 3
    v_and_b32 v2, 3, v2
    s_cmp_lt_u32 s7, 4
    s_cbranch_scc1 L_C""")
    vLane = 1; vQ = 2
    R = RegAlloc(3)
    t0 = R.alloc(); t1 = R.alloc(); t2 = R.alloc()
    vAW2 = R.alloc(12); vOH = R.alloc(); vOH2 = R.alloc(); vRW = R.alloc(2); vRR = R.alloc(2); vOO = R.alloc(); vN = R.alloc(); vNA = R.alloc(); vFA = R.alloc()
    vF = R.alloc(2); vD = R.alloc()
    vb2 = R.alloc(4, 4); vbf = R.alloc(8, 2)
    base = R.n
    R1 = RegAlloc(base)
    vAX = R1.alloc(8); vAW = R1.alloc(2); vFS = R1.alloc(); vFV = R1.alloc(3); vC0 = R1.alloc(2, 2)
    acc = R1.alloc(48, 4)
    fx = [R1.alloc(4, 4) for _ in range(3)]
    fw = [R1.alloc(12, 4) for _ in range(3)]
    T = R1.alloc(8, 4); O = [R1.alloc(4, 4) for _ in range(6)]
    RL = RegAlloc(base)
    vOX = RL.alloc(4); vOW = RL.alloc(3); vOW2 = RL.alloc(4)
    assert RL.n <= acc
    R2 = RegAlloc(R1.n)
    acc2 = R2.alloc(32, 4)
    fw2 = [R2.alloc(8, 4) for _ in range(2)]
    st0 = R2.alloc(16, 4)
    lastbuf = acc2
    R2b = RegAlloc(acc)
    fh = [R2b.alloc(4, 4) for _ in range(22)]
    assert R2b.n <= T
    nv = R2.n

    def common_setup():
        a("""s_add_u32 s30, s3, 1
        s_and_b32 s30, s30, 3
        s_lshl_b32 s30, s30, 1
        s_lshl_b32 s25, s5, 3
        s_add_u32 s25, s25, s30
        s_lshr_b32 s30, s3, 2
        s_add_u32 s25, s25, s30
        s_lshr_b32 s29, s7, 2
        s_lshl_b32 s26, s28, 12
        s_mul_i32 s27, s28, 11""")
        a(f"""v_lshrrev_b32 v{t0}, 5, v{vLane}
        v_lshlrev_b32 v{t0}, 4, v{t0}
        v_bfe_u32 v{t1}, v{vLane}, 2, 3
        v_add_u32 v{t0}, v{t0}, v{t1}
        v_lshlrev_b32 v{t0}, 7, v{t0}
        v_bfe_u32 v{t1}, v{vLane}, 3, 2
        v_lshl_add_u32 v{t0}, v{t1}, 5, v{t0}
        v_and_b32 v{t1}, 3, v{vLane}
        v_lshl_add_u32 v{t0}, v{t1}, 3, v{t0}
        v_lshl_add_u32 v{vAW2}, v{vQ}, 12, v{t0}
        v_xor_b32 v{vAW2+1}, 32, v{vAW2}
        v_xor_b32 v{vAW2+2}, 64, v{vAW2}
        v_xor_b32 v{vAW2+3}, 0x60, v{vAW2}
        v_add_u32 v{vAW2+4}, 65536, v{vAW2}
        v_add_u32 v{vAW2+5}, 65536, v{vAW2+1}
        v_add_u32 v{vAW2+6}, 65536, v{vAW2+2}
        v_add_u32 v{vAW2+7}, 65536, v{vAW2+3}
        v_add_u32 v{vAW2+8}, 131072, v{vAW2}
        v_add_u32 v{vAW2+9}, 131072, v{vAW2+1}
        v_add_u32 v{vAW2+10}, 131072, v{vAW2+2}
        v_add_u32 v{vAW2+11}, 131072, v{vAW2+3}
        v_lshrrev_b32 v{t0}, 4, v{vLane}
        v_lshlrev_b32 v{t0}, 9, v{t0}
        v_and_b32 v{t1}, 15, v{vLane}
        v_lshl_add_u32 v{vOH2}, v{t1}, 4, v{t0}
        v_lshlrev_b32 v{vOH}, 4, v{vLane}
        s_cmp_eq_u32 s29, 0
        s_cselect_b32 s30, {DBASE + 16384}, 0
        v_and_b32 v{t0}, 15, v{vLane}
        v_lshrrev_b32 v{t1}, 4, v{vLane}
        v_and_b32 v{t2}, 7, v{vLane}
        v_xor_b32 v{t1}, v{t1}, v{t2}
        v_lshlrev_b32 v{t1}, 4, v{t1}
        v_lshl_add_u32 v{t1}, v{t0}, 8, v{t1}
        v_lshl_add_u32 v{t1}, v{vQ}, 13, v{t1}
        v_add_u32 v{vRW}, s30, v{t1}
        v_xor_b32 v{vRW+1}, 64, v{vRW}
        v_lshrrev_b32 v{t0}, 3, v{vLane}
        v_lshlrev_b32 v{t1}, 1, v{t2}
        v_xor_b32 v{t1}, v{t1}, v{t0}
        v_lshlrev_b32 v{t1}, 4, v{t1}
        v_lshl_add_u32 v{t0}, v{vQ}, 3, v{t0}
        v_lshl_add_u32 v{t1}, v{t0}, 8, v{t1}
        v_add_u32 v{vRR}, s30, v{t1}
        v_xor_b32 v{vRR+1}, 16, v{vRR}
        v_lshlrev_b32 v{t2}, 4, v{t2}
        v_lshl_add_u32 v{vOO}, v{t0}, 10, v{t2}
        v_and_b32 v{t0}, 31, v{vLane}
        v_lshlrev_b32 v{vNA}, 2, v{t0}
        v_and_b32 v{vFA}, 15, v{vLane}
        v_lshlrev_b32 v{vFA}, 2, v{vFA}
        s_lshl_b32 s30, s25, 1
        s_add_u32 s30, s30, s29
        s_mul_i32 s68, s30, {MBS}
        s_lshl_b32 s69, s4, 7
        s_lshl_b32 s67, s30, 15
        s_add_u32 s67, s67, s69""")
    def goff(pos, shift, dst):
        a(f"s_add_u32 {dst}, s27, {pos}")
        a(f"s_lshl_b32 {dst}, {dst}, {shift}")
    def common_srds():
        a(f"""s_mov_b32 s40, s22
        s_mov_b32 s41, s23
        s_mov_b32 s42, {H_BYTES}
        s_mov_b32 s43, 0x20000
        s_mov_b32 s44, s20
        s_mov_b32 s45, s21
        s_mov_b32 s46, 256
        s_mov_b32 s47, 0x20000
        s_add_u32 s52, s18, s67
        s_addc_u32 s53, s19, 0
        s_sub_u32 s54, 2097152, s67
        s_mov_b32 s55, 0x20000""")
    def b2_load():
        a("""s_mov_b32 s32, s16
        s_mov_b32 s33, s17
        s_mov_b32 s34, 1024
        s_mov_b32 s35, 0x20000""")
        a(f"v_and_b32 v{t1}, 7, v{vLane}")
        a(f"v_lshlrev_b32 v{t1}, 4, v{t1}")
        a(f"buffer_load_dwordx4 {vr(vb2,4)}, v{t1}, s[32:35], s69 offen")
    def WS(pos):
        return [st0, fw2[0], O[0]][pos % 3] if deep else (st0 if pos % 2 == 0 else fw2[0])
    def wrd(pos):
        off = w2_lds(pos); k = off >> 16; off -= k << 16
        W = WS(pos)
        return [f"ds_read_b64_tr_b16 {vr(W+4*o+2*q,2)}, v{vAW2+4*k+o} offset:{off+q*1024}" for o in range(4) for q in range(2)]
    def stage0():
        for x in wrd(0): a(x)
    def ph2_scalars():
        a(f"s_add_u32 s63, s68, {MB_BYTES}")
        a("s_add_u32 s36, s22, s68")
        a("s_addc_u32 s37, s23, 0")
        a(f"s_mov_b32 s38, {MB_BYTES}")
        a("s_mov_b32 s39, 0x20000")
        a("s_lshl_b32 s31, s28, 4")
        a("s_mov_b32 s60, 0x00f8000f")
        a("s_mov_b32 s61, 0x78000780")
        a("s_lshr_b64 s[60:61], s[60:61], s31")
        a(f"s_and_b32 s56, s60, 0xffff")
    def acc2_zero():
        pass
    def acc2_bias():
        for i in range(4):
            a(f"v_lshlrev_b32 v{vbf+2*i}, 16, v{vb2+i}")
            a(f"v_and_b32 v{vbf+2*i+1}, 0xffff0000, v{vb2+i}")
    def poll_issue(k, o=a):
        o(f"buffer_load_dword v{vF+k}, v{vFA}, s[40:43], s63 offen sc1")
    def chk(k, st, o=a):
        lvl = st + 1 if staged else 3
        o(f"v_subrev_u32 v{vD}, s62, v{vF+k}")
        o(f"v_subrev_u32 v{vD}, {lvl}, v{vD}")
        o(f"v_cmp_ge_u32 vcc, {3-lvl}, v{vD}")
        o("s_nop 1")
        o(f"s_and_b32 s31, vcc_lo, s{56+st}")
        o(f"s_cmp_eq_u32 s31, s{56+st}")

    a.c("loader waves")
    a({"r2": """s_add_u32 s62, s5, s4
    s_and_b32 s62, s62, 1
    s_lshl_b32 s62, s62, 2
    s_lshr_b32 s30, s3, 2
    s_add_u32 s30, s30, s3
    s_and_b32 s30, s30, 1
    s_lshl_b32 s30, s30, 1
    s_add_u32 s62, s62, s30""",
       "none": "s_mov_b32 s62, 4",
       "xcd": "s_mov_b32 s62, s3",
       "cu": "s_lshl_b32 s62, s5, 1\ns_add_u32 s62, s62, s4\ns_and_b32 s62, s62, 7",
       "r2b": "s_add_u32 s62, s5, s4\ns_and_b32 s62, s62, 1\ns_lshl_b32 s62, s62, 2\ns_add_u32 s62, s62, s3\ns_and_b32 s62, s62, 7",
       "r4": "s_add_u32 s62, s5, s4\ns_and_b32 s62, s62, 3\ns_lshl_b32 s62, s62, 1",
       "r1": "s_add_u32 s62, s5, s4\ns_and_b32 s62, s62, 1\ns_add_u32 s62, s62, 4",
       }[rot])
    a(f"""v_lshrrev_b32 v{t0}, 3, v{vLane}
    v_lshl_add_u32 v{t0}, v{vQ}, 5, v{t0}
    v_lshlrev_b32 v{t0}, 10, v{t0}
    v_lshrrev_b32 v{t1}, 4, v{vLane}
    v_and_b32 v{t2}, 7, v{vLane}
    v_xor_b32 v{t1}, v{t1}, v{t2}
    v_lshl_add_u32 v{vOX}, v{t1}, 4, v{t0}
    v_xor_b32 v{t1}, 4, v{t1}
    v_lshl_add_u32 v{vOX+1}, v{t1}, 4, v{t0}
    v_add_u32 v{vOX+1}, {8192-1024}, v{vOX+1}
    v_add_u32 v{vOX+2}, {2*(8192-1024)}, v{vOX}
    v_add_u32 v{vOX+3}, {2*(8192-1024)}, v{vOX+1}
    s_nop 0""")
    def w1calc():
        a(f"""v_mul_u32_u24 v{t0}, 192, v{vQ}
        v_add_u32 v{t0}, v{t0}, v{vLane}""")
        for j in range(3):
            if j:
                a(f"v_add_u32 v{t0}, 64, v{t0}")
            a(f"v_mul_u32_u24 v{t1}, 43691, v{t0}")
            a(f"v_lshrrev_b32 v{t1}, 19, v{t1}")
            a(f"v_mul_u32_u24 v{t2}, 12, v{t1}")
            a(f"v_sub_u32 v{t2}, v{t0}, v{t2}")
            a(f"v_mul_u32_u24 v{t1}, 2752, v{t1}")
            a(f"v_lshl_add_u32 v{vOW+j}, v{t2}, 4, v{t1}")
            if j:
                a(f"v_subrev_u32 v{vOW+j}, {1024*j}, v{vOW+j}")
    a("""s_lshl_b32 s56, s28, 12
    s_lshl_b32 s59, s6, 17
    s_cmp_eq_u32 s24, 15
    s_cselect_b32 s34, 0, 131072
    s_mov_b32 s35, 0x20000
    s_waitcnt lgkmcnt(0)""")
    stamp(1); xst(1)
    a("""s_add_u32 s32, s8, s59
    s_addc_u32 s33, s9, 0""")
    def w1srd():
        a("""s_mul_i32 s57, s28, 3072
        s_add_u32 s57, s57, 16384
        s_mul_i32 s58, s24, 192
        s_sub_u32 s38, 1409024, s58
        s_cmp_eq_u32 s24, 15
        s_cselect_b32 s38, 0, s38
        s_mov_b32 s39, 0x20000
        s_add_u32 s36, s10, s58
        s_addc_u32 s37, s11, 0""")
    items = []
    for c in range(8):
        slot = c % 4
        for j in range(7):
            l = []
            if j == 0:
                l += [f"s_add_u32 m0, s56, {slot*SLOT}", "s_lshl_b32 s63, s62, 7"]
            if j == 4:
                l += [f"s_add_u32 m0, s57, {slot*SLOT}", "s_mul_i32 s63, s62, 176128", "s_add_u32 s62, s62, 1", "s_and_b32 s62, s62, 7"]
            if j < 4: l.append(f"buffer_load_dwordx4 v{vOX+j}, s[32:35], s63 offen offset:{1024*j} lds")
            else: l.append(f"buffer_load_dwordx4 v{vOW+j-4}, s[36:39], s63 offen offset:{1024*(j-4)} lds")
            items.append((l, f"c{c}", c - 3))
    W2B = {0: -9, 1: -9, 2: -9, 3: 5, 4: 6, 5: 6, 6: 7, 7: 7}
    for pos in range(early):
        for j in range(4):
            items.append((("W2", pos, j), f"p{pos}", W2B[pos]))
    vmL = Cnt(); ptr = [0]
    def emit(n, bar):
        while ptr[0] < min(n, len(items)) and items[ptr[0]][2] <= bar:
            l, tag, _ = items[ptr[0]]
            if l[0] == "W2":
                _, pos, j = l
                if j == 0:
                    a(f"s_add_u32 m0, s26, {w2_lds(pos)}")
                    goff(pos, 15, "s66")
                a(f"buffer_load_dwordx4 v{vOW2+j}, s[48:51], s66 offen offset:{1024*j} lds")
            else:
                for x in l: a(x)
            vmL.issue(tag); ptr[0] += 1
    def dma2(pos):
        a(f"s_add_u32 m0, s26, {w2_lds(pos)}")
        goff(pos, 15, "s66")
        for j in range(4):
            a(f"buffer_load_dwordx4 v{vOW2+j}, s[48:51], s66 offen offset:{1024*j} lds")
    emit(4, -1)
    w1calc(); w1srd()
    emit(pre1, -1); xst(2)
    common_setup()
    common_srds()
    a(f"""v_lshrrev_b32 v{t0}, 3, v{vLane}
    v_bfe_u32 v{t1}, v{vLane}, 4, 2
    v_lshlrev_b32 v{t1}, 1, v{t1}
    v_and_b32 v{t2}, 7, v{vLane}
    v_xor_b32 v{t1}, v{t1}, v{t2}
    v_lshlrev_b32 v{t0}, 10, v{t0}
    v_lshl_add_u32 v{vOW2}, v{t1}, 4, v{t0}""")
    for j in range(1, 4):
        a(f"v_add_u32 v{vOW2+j}, {j*(8192-1024)}, v{vOW2}")
    a("""s_lshl_b32 s30, s4, 7
    s_add_u32 s48, s14, s30
    s_addc_u32 s49, s15, 0
    s_sub_u32 s50, 1409024, s30
    s_mov_b32 s51, 0x20000""")
    if lsp:
        a("""s_lshl_b32 s30, s2, 2
        s_add_u32 s30, s30, s28
        s_mul_i32 s30, s30, 1376
        s_and_b32 s30, s30, 0xffffffc0
        s_add_u32 s58, s14, s30
        s_addc_u32 s59, s15, 0
        s_lshr_b32 s30, s2, 3
        s_mul_i32 s30, s30, 43
        s_mul_i32 s31, s28, 11
        s_add_u32 s30, s30, s31
        s_min_u32 s30, s30, 1365
        s_lshl_b32 s30, s30, 10
        s_add_u32 s60, s14, s30
        s_addc_u32 s61, s15, 0""")
        lds_ = []
        for i in range(22):
            lds_.append(f"s_load_dword s31, s[60:61], {(i//2)*1024+384+(i&1)*64}")
            if lmall: lds_.append(f"s_load_dword s31, s[58:59], {min(i*64, 1372)}")
        per = (len(lds_) + len(lsp) - 1) // len(lsp)
    xst(3)
    for i in range(8):
        la = LA[i] if isinstance(LA, (list, tuple)) else LA
        emit(7 * (i + 1) + la, i - 1)
        fstamp(2*i)
        a(f"s_waitcnt vmcnt({vmL.need(f'c{i}')})")
        fstamp(2*i+1)
        if i == 0: xst(4)
        a("s_barrier")
        if i == 0: stamp(2)
        if i == 7: stamp(3)
        if lsp and i in lsp:
            for x in lds_[lsp.index(i)*per:(lsp.index(i)+1)*per]: a(x)
    emit(999, 7)
    b2_load()
    stamp(4)
    a("s_waitcnt lgkmcnt(0)")
    if npz:
        a(f"s_add_u32 s30, s27, {early}")
        a("s_lshl_b32 s30, s30, 5")
        a("s_lshr_b32 s31, s2, 3")
        a(f"s_mul_i32 s31, s31, {(npz+15)//16}")
        a("s_add_u32 s30, s30, s31")
        a("s_min_u32 s30, s30, 1368")
        a("s_lshl_b32 s30, s30, 10")
        a("s_add_u32 s64, s14, s30")
        a("s_addc_u32 s65, s15, 0")
    a(f"buffer_load_dword v{vN}, v{vNA}, s[44:47], 0 offen sc1")
    ph2_scalars()
    for i in range(npz): a(f"s_load_dword s59, s[64:65], {i*64}")
    acc2_zero()
    a("s_waitcnt vmcnt(0)")
    acc2_bias()
    stage0()
    stamp(5); xst(12)
    a("s_barrier")
    stamp(6)
    if ldel: a(f"s_sleep {ldel}")
    if trot:
        n = 10 - early
        a(f"s_mul_i32 s64, s5, {trot}")
        for k in range(n):
            a(f"s_cmp_ge_u32 s64, {n}")
            a(f"s_cselect_b32 s65, {n}, 0")
            a("s_sub_u32 s64, s64, s65")
            a("s_lshl_b32 s65, s64, 14")
            a("s_add_u32 s65, s65, s26")
            a(f"s_add_u32 m0, s65, {w2_lds(early)}")
            a("s_add_u32 s66, s64, s27")
            a(f"s_add_u32 s66, s66, {early}")
            a("s_lshl_b32 s66, s66, 15")
            for j in range(4):
                a(f"buffer_load_dwordx4 v{vOW2+j}, s[48:51], s66 offen offset:{1024*j} lds")
            a("s_add_u32 s64, s64, 1")
    else:
        for pos in range(early, 10):
            if tthr is not None and pos > early: a(f"s_waitcnt vmcnt({tthr})")
            dma2(pos)
    poll_issue(0)
    a("s_waitcnt lgkmcnt(0)")
    a("s_barrier")
    dma2(10)
    poll_issue(1)
    a("s_waitcnt vmcnt(5)")
    a("s_branch L_PHASE2")

    a.label("L_NOFLAG")
    a("s_waitcnt vmcnt(0) lgkmcnt(0)")
    a("s_barrier")
    stage0()
    acc2_zero(); acc2_bias()
    a("s_branch L_C2")
    a.raw("STUBS_HERE")
    a.label("L_PAD")
    a.raw("PAD_HERE")
    a.label("L_C")
    xst(5)
    common_setup()
    a(f"""v_and_b32 v{t0}, 31, v{vLane}
    v_lshrrev_b32 v{t1}, 1, v{t0}
    v_and_b32 v{t1}, 7, v{t1}
    v_lshrrev_b32 v{t2}, 5, v{vLane}
    v_xor_b32 v{t1}, v{t1}, v{t2}
    v_lshlrev_b32 v{t0}, 7, v{t0}
    v_lshl_add_u32 v{t0}, v{vQ}, 12, v{t0}""")
    for t in range(4):
        a(f"v_xor_b32 v{vAX+t}, {2*t}, v{t1}")
        a(f"v_lshl_add_u32 v{vAX+t}, v{vAX+t}, 4, v{t0}")
        a(f"v_add_u32 v{vAX+4+t}, {2*SLOT}, v{vAX+t}")
    bA = acc2; bB = acc2 + 4
    for i in range(12): a(f"v_mov_b32 v{bB+i}, 0")
    a(f"""v_mov_b32 v{bA+2}, 0
    v_mov_b32 v{bA+3}, 0
    v_mul_u32_u24 v{bB+4}, 0x3f80, v{t2}
    v_xor_b32 v{bB}, 0x3f80, v{bB+4}
    v_mov_b32 v{bB+9}, v{bB}
    v_lshlrev_b32 v{t1}, 3, v{t2}
    v_bfe_u32 v{t0}, v{vLane}, 2, 2
    v_add_u32 v{t0}, v{t0}, v{t1}
    v_mul_u32_u24 v{t0}, 192, v{t0}
    v_bfe_u32 v{t1}, v{vLane}, 4, 1
    v_lshl_add_u32 v{t0}, v{t1}, 5, v{t0}
    v_and_b32 v{t1}, 3, v{vLane}
    v_lshl_add_u32 v{t0}, v{t1}, 3, v{t0}
    v_add_u32 v{vAW}, 16384, v{t0}
    v_add_u32 v{vAW+1}, {2*SLOT+16384}, v{t0}
    v_mov_b32 v{vC0}, 0x{f32bits(C0):08x}
    v_mov_b32 v{vC0+1}, 0x{f32bits(C0):08x}
    s_mov_b32 s48, 0x{f32bits(C1):08x}
    s_mov_b32 s49, 0x{f32bits(C1):08x}
    v_bfe_u32 v{t0}, v{vLane}, 4, 1
    v_mul_u32_u24 v{t0}, {MBS}, v{t0}
    v_add_u32 v{t0}, v{t0}, v{vFA}
    v_lshlrev_b32 v{t2}, 1, v{vLane}
    v_lshlrev_b32 v{vFS}, 24, v{vLane}
    s_mul_i32 s58, s24, 192
    s_lshl_b32 s59, s6, 2
    s_add_u32 s59, s59, s7
    s_mul_i32 s62, s59, {MBS}
    s_mul_i32 s61, s24, 6144
    s_add_u32 s50, s62, s61
    s_add_u32 s51, s50, 4096
    s_lshl_b32 s63, s24, 2
    s_add_u32 s62, s62, s63
    s_add_u32 s66, s62, {MB_BYTES}
    s_mul_i32 s63, s25, {2*MBS}
    s_add_u32 s63, s63, {MB_BYTES}
    s_lshr_b32 s59, s59, 1
    s_waitcnt lgkmcnt(0)""")
    stamp(1); xst(6)
    a(f"""s_mov_b32 s32, s12
    s_mov_b32 s33, s13
    s_mov_b32 s34, 2752
    s_mov_b32 s35, 0x20000
    buffer_load_ushort v{bA}, v{t2}, s[32:35], s58 offen
    buffer_load_ushort v{bA+1}, v{t2}, s[32:35], s58 offen offset:128""")
    common_srds()
    a(f"""s_or_b32 s61, s4, s7
    s_cmp_lg_u32 s61, 0
    s_cbranch_scc1 L_NOLEAD
    buffer_load_dword v{vF}, v{t0}, s[40:43], s63 offen sc1
    v_bfe_u32 v{t1}, v{vLane}, 4, 1
    v_sub_u32 v{t1}, v{vLane}, v{t1}
    v_add_u32 v{t1}, 2, v{t1}
    s_nop 0""")
    a.label("L_NOLEAD")
    xst(7)
    def lead2():
        a(f"""s_or_b32 s61, s4, s7
        s_cmp_lg_u32 s61, 0
        s_cbranch_scc1 L_NOLEAD2
        v_bfe_u32 v{t1}, v{vLane}, 4, 1
        v_sub_u32 v{t1}, v{vLane}, v{t1}
        v_add_u32 v{t1}, 2, v{t1}
        v_lshrrev_b32 v{t1}, v{t1}, v{vF}
        v_and_b32 v{t1}, 1, v{t1}
        v_cmp_eq_u32 vcc, 0, v{t1}
        s_lshl_b32 s30, s25, 2
        s_nop 0
        s_and_b32 s31, vcc_lo, 0x7fff
        s_lshl_b32 s31, s31, 2
        s_and_b32 s61, vcc_lo, 0x7fff0000
        s_lshl_b32 s61, s61, 1
        s_or_b32 s31, s31, s61
        s_or_b32 s31, s31, 1
        v_mov_b32 v{t1}, s31
        buffer_store_dword v{t1}, v{vFS}, s[44:47], s30 offen sc1""")
        a.label("L_NOLEAD2")
    ph2_scalars()
    a("s_mov_b32 s67, 0")
    def rd(c, t, s):
        slot = c % 4
        hi = slot >> 1; off = (slot & 1) * SLOT
        l = [f"ds_read_b128 {vr(fx[s],4)}, v{vAX+4*hi+t} offset:{off}"]
        for p in range(3):
            for q in range(2):
                l.append(f"ds_read_b64_tr_b16 {vr(fw[s]+4*p+2*q,2)}, v{vAW+hi} offset:{off+t*3072+q*768+p*64}")
        return l
    def mf(s, z=False):
        return [f"v_mfma_f32_32x32x16_bf16 {vr(acc+16*p,16)}, {vr(fw[s]+4*p,4)}, {vr(fx[s],4)}, {'0' if z else vr(acc+16*p,16)}" for p in range(3)]
    def inter(m, r):
        for x in [m[0], r[0], r[1], r[2], m[1], r[3], r[4], m[2], r[5], r[6]]:
            a(x)
    vm = Cnt()
    def hstore(idx):
        so = "s50" if idx < 4 else "s51"
        if idx == 5: gst(8)
        if late_st:
            if idx < 5:
                gst(2 + idx); return
            for k in range(5):
                a(f"buffer_store_dwordx4 {vr(O[k],4)}, v{vOH}, s[40:43], {'s50' if k < 4 else 's51'} offen offset:{(k%4)*1024} sc1")
        a(f"buffer_store_dwordx4 {vr(O[idx],4)}, v{vOH}, s[40:43], {so} offen offset:{(idx%4)*1024} sc1")
        vm.issue(f"st{idx}")
        gst(2 + idx)
        if idx == 5: gst(10, True)
    def flag(lvl):
        a(f"buffer_store_dword v{vFV+lvl-1}, v{vFS}, s[40:43], s66 offen sc1")
        vm.issue(f"f{lvl}")
    xst(8)
    for c in range(7):
        fstamp(2*c)
        a("s_barrier")
        fstamp(2*c+1)
        if c == 0: stamp(2)
        if c == 5:
            a(f"buffer_load_dword v{vN}, v{vNA}, s[44:47], 0 offen sc1")
            b2_load()
        for x in rd(c, 0, (4*c) % 3): a(x)
        if c >= 1:
            inter(mf((4*c - 1) % 3), rd(c, 1, (4*c+1) % 3))
        else:
            for x in rd(c, 1, (4*c+1) % 3): a(x)
        a("s_waitcnt lgkmcnt(7)")
        inter(mf((4*c) % 3, c == 0), rd(c, 2, (4*c+2) % 3))
        a("s_waitcnt lgkmcnt(7)")
        inter(mf((4*c+1) % 3), rd(c, 3, (4*c+3) % 3))
        a("s_waitcnt lgkmcnt(7)")
        for x in mf((4*c+2) % 3): a(x)
        if c == bat:
            a("s_waitcnt vmcnt(0)")
            for p in range(3):
                a(f"v_mfma_f32_32x32x16_bf16 {vr(acc+16*p,16)}, {vr(bA,4)}, {vr(bB+4*p,4)}, {vr(acc+16*p,16)}")
            lead2()
        a("s_waitcnt lgkmcnt(0)")
        if c == 6:
            for x in mf(27 % 3): a(x)
    fstamp(14)
    a("s_barrier")
    fstamp(15); gst(12); gst(13, True)
    stamp(3)
    LX = lambda t: lastbuf + 4*t
    LW = lambda p, t: lastbuf + 16 + 16*p + 4*t
    def rx(t): return f"ds_read_b128 {vr(LX(t),4)}, v{vAX+4+t} offset:{SLOT}"
    def rw(p, t): return [f"ds_read_b64_tr_b16 {vr(LW(p,t)+2*q,2)}, v{vAW+1} offset:{SLOT+t*3072+q*768+p*64}" for q in range(2)]
    def m(p, t): return f"v_mfma_f32_32x32x16_bf16 {vr(acc+16*p,16)}, {vr(LW(p,t),4)}, {vr(LX(t),4)}, {vr(acc+16*p,16)}"
    for t in range(4):
        a(rx(t))
        for x in rw(0, t): a(x)
    a("s_waitcnt lgkmcnt(9)"); a(m(0, 0))
    for x in rw(1, 0) + rw(1, 1): a(x)
    a("s_waitcnt lgkmcnt(10)"); a(m(0, 1))
    for x in rw(1, 2) + rw(1, 3): a(x)
    a("s_waitcnt lgkmcnt(11)"); a(m(0, 2))
    for x in rw(2, 0) + rw(2, 1): a(x)
    a("s_waitcnt lgkmcnt(12)"); a(m(0, 3))
    for x in rw(2, 2): a(x)
    a("s_waitcnt lgkmcnt(12)"); a(m(1, 0))
    for x in rw(2, 3): a(x)
    a("s_waitcnt lgkmcnt(8)"); a(m(1, 1))
    stamp(4); xst(9); gst(1); gst(9, True)
    a("s_cmp_eq_u32 s24, 15")
    a("s_cbranch_scc1 L_NOFLAG")
    a("s_nop 1")
    rest = [m(1, 2), m(1, 3), "W0", m(2, 0), m(2, 1), m(2, 2), m(2, 3)]
    cost = 0; nxt = 24
    for ins in gelu8_sc(acc, T, O[0], 48, vC0):
        a(ins)
        cost += 8 if ("exp" in ins or "rcp" in ins) else 4
        if cost >= nxt and rest:
            x = rest.pop(0)
            if x == "W0":
                a("s_waitcnt lgkmcnt(0)"); x = rest.pop(0)
            a(x); nxt = cost + 24
    assert not rest
    hstore(0)
    for ins in gelu8_pk(acc + 8, T, O[1], 48, vC0): a(ins)
    hstore(1)
    a("s_waitcnt vmcnt(0)" if late_st else "s_waitcnt vmcnt(2)")
    a.label("L_PN")
    a(f"v_readlane_b32 s31, v{vN}, s59")
    a("s_add_u32 s67, s67, 1")
    a("s_nop 1")
    a("s_cmp_eq_u32 s31, 0")
    a("s_cbranch_scc1 L_PN_RETRY")
    a.label("L_PN_OK")
    stubs.label("L_PN_RETRY")
    stubs(f"s_cmp_gt_u32 s67, {LIM}")
    stubs("s_cbranch_scc1 L_PN_OK")
    stubs("s_sleep 16")
    stubs(f"buffer_load_dword v{vN}, v{vNA}, s[44:47], 0 offen sc1")
    stubs("s_waitcnt vmcnt(0)")
    stubs("s_branch L_PN")
    a(f"v_mov_b32 v{vFV}, s31")
    a(f"v_add_u32 v{vFV+1}, 1, v{vFV}")
    a(f"v_add_u32 v{vFV+2}, 2, v{vFV}")
    a("s_cmp_eq_u32 s24, 14")
    a("s_cbranch_scc1 L_ST14")
    stubs.label("L_ST14")
    if d14: stubs(f"s_sleep {d14}")
    stubs("s_barrier")
    stubs("s_branch L_LASTF")
    for idx in range(2, 6):
        for ins in gelu8_pk(acc + 8*idx, T, O[idx], 48, vC0): a(ins)
        hstore(idx)
        if idx == bs_at: a("s_barrier")
        if staged and idx == f1at:
            a(f"s_waitcnt vmcnt({vm.need('st1')})")
            flag(1)
    stamp(5); xst(10)
    if staged:
        a(f"s_waitcnt vmcnt({vm.need('st3')})")
        flag(2)
    a.label("L_LASTF")
    stage0()
    acc2_zero(); acc2_bias()
    a(f"s_waitcnt vmcnt(0)")
    stamp(6); xst(11); gst(11)
    flag(3)
    a.label("L_C2")
    poll_issue(1)
    a(f"v_mov_b32 v{vF}, 0")
    a("s_waitcnt lgkmcnt(0)")
    a("s_barrier")

    a.label("L_PHASE2")
    stamp(7)
    a("s_mov_b32 s67, 0")
    a.label("L_CN")
    a(f"v_readlane_b32 s62, v{vN}, s25")
    a("s_add_u32 s67, s67, 1")
    a("s_nop 1")
    a("s_cmp_eq_u32 s62, 0")
    a("s_cbranch_scc1 L_CN_RETRY")
    a.label("L_CN_OK")
    stubs.label("L_CN_RETRY")
    stubs(f"s_cmp_gt_u32 s67, {LIM}")
    stubs("s_cbranch_scc1 L_CN_OK")
    stubs("s_sleep 16")
    stubs(f"buffer_load_dword v{vN}, v{vNA}, s[44:47], 0 offen sc1")
    stubs("s_waitcnt vmcnt(0)")
    stubs("s_branch L_CN")
    a("s_sub_u32 s62, s62, 1")
    chk(0, 0)
    a("s_cbranch_scc1 L_GO")
    if npoll == 1:
        a.label("L_POLL")
        a(f"s_waitcnt vmcnt(0)")
        chk(1, 0)
        a("s_cbranch_scc1 L_GO")
        a("s_add_u32 s67, s67, 1")
        if psleep: a(f"s_sleep {psleep}")
        poll_issue(1)
        a(f"s_cmp_le_u32 s67, {LIM}")
        a("s_cbranch_scc1 L_POLL")
    else:
        order = list(range(1, npoll + 1))
        for k in order[1:]:
            poll_issue(k)
            if k != order[-1]: a(f"s_sleep {pgap}")
        a.label("L_POLL")
        for k in order:
            a(f"s_waitcnt vmcnt({npoll-1})")
            chk(k, 0)
            a("s_cbranch_scc1 L_GO")
            if psleep: a(f"s_sleep {psleep}")
            poll_issue(k)
        a("s_add_u32 s67, s67, 1")
        a(f"s_cmp_le_u32 s67, {LIM}")
        a("s_cbranch_scc1 L_POLL")
    a.label("L_GO")
    stamp(8)
    vm = Cnt(); lg = Cnt()
    order = list(range(16)) + [16, 18, 20, 17, 19, 21]
    def hload(s):
        if s < 16:
            if s % 2 == 0: goff(s >> 1, 11, "s66")
            so = "s66"; io = (s & 1) * 256
        else:
            if s == 16:
                goff(8, 11, "s66"); a("s_add_u32 s64, s66, 4096")
            so = "s66" if s < 20 else "s64"; io = (s & 1) * 256 + (2048 if s in (18, 19) else 0)
        a(f"buffer_load_dwordx4 {vr(fh[s],4)}, v{vOH2}, s[36:39], {so} offen offset:{io} sc1")
        vm.issue(f"h{s}")
    for k in range(PF): hload(order[k])
    for x in wrd(1): a(x)
    lg.issue("w1", 8)
    def M(pos, mi, o):
        ac = vr(acc2 + 8*o + 4*mi, 4)
        return f"v_mfma_f32_16x16x32_bf16 {ac}, {vr(WS(pos)+4*o,4)}, {vr(fh[2*pos+mi],4)}, {'0' if pos == 0 else ac}"
    def DW(o, mi):
        return f"ds_write_b128 v{vRW+(o&1)}, {vr(acc2+8*o+4*mi,4)} offset:{(o>>1)*128+mi*4096}"
    for k in range(19):
        s = order[k]; pos = s >> 1; mi = s & 1
        if s == 6:
            a("s_waitcnt lgkmcnt(0)")
            a("s_barrier")
        w = f"s_waitcnt vmcnt({vm.need(f'h{s}')})"
        if mi == 0 and pos >= 1: w += f" lgkmcnt({lg.need(f'w{pos}')})"
        a(w)
        if s == 0: stamp(9)
        r = wrd(pos + 2) if pos + 2 <= 10 else []
        if pos < 8: r = r[4*mi:4*mi+4]
        per_ = (len(r) + 3) // 4
        for o in range(4):
            a(M(pos, mi, o))
            for x in r[per_*o:per_*o+per_]:
                a(x); lg.issue(f"w{pos+2}")
        if k + PF < 22: hload(order[k + PF])
    a("s_waitcnt vmcnt(0)")
    stamp(10)
    seq = [M(8,1,0), M(9,1,0), M(10,1,0), M(8,1,1), DW(0,0), M(9,1,1), DW(1,0), M(10,1,1), DW(2,0), M(8,1,2), DW(3,0), M(9,1,2), DW(0,1),
           M(10,1,2), M(8,1,3), M(9,1,3), M(10,1,3), DW(1,1), "s_nop 3", DW(2,1), "s_nop 1", DW(3,1)]
    for x in seq: a(x)
    stamp(11)
    a("s_waitcnt lgkmcnt(0)")
    a("s_barrier")
    stamp(12)
    rdm = fh[0]
    for k in range(4):
        for e in range(2):
            a(f"ds_read_b128 {vr(rdm+8*k+4*e,4)}, v{vRR+e} offset:{k*8192}")
    for k in range(4):
        a(f"s_waitcnt lgkmcnt({6-2*k})")
        for i in range(0, 8, 2):
            a(f"v_pk_add_f32 {vr(vbf+i,2)}, {vr(vbf+i,2)}, {vr(rdm+8*k+i,2)}")
    od = fw2[0]
    for i in range(4):
        a(f"v_cvt_pk_bf16_f32 v{od+i}, v{vbf+2*i}, v{vbf+2*i+1}")
    a(f"buffer_store_dwordx4 {vr(od,4)}, v{vOO}, s[52:55], 0 offen {oaux}")
    if bf is not None:
        a("s_cmp_lg_u32 s29, 0")
        a("s_cbranch_scc1 L_NOBF2")
        a("s_barrier")
        a.label("L_NOBF2")
    if prof:
        stamp(13)
        a("s_waitcnt vmcnt(0)")
        stamp(14)
        a("s_waitcnt lgkmcnt(0)")
        if prof != 2:
            a(f"s_mov_b32 s{SB+30}, s67")
            a(f"s_mov_b32 s{SB+31}, 0")
        a(f"s_add_u32 s44, s22, {128<<20}")
        a(f"s_addc_u32 s45, s23, 0")
        a("s_mov_b32 s46, 0x1000000")
        a("s_mov_b32 s47, 0x20000")
        a("s_lshl_b32 s48, s2, 3")
        a("s_add_u32 s48, s48, s7")
        a(f"s_mul_i32 s48, s48, {NST*8}")
        a("v_mov_b32 v1, 0")
        for i in range(NST):
            a(f"v_mov_b32 v2, s{SB+2*i}")
            a(f"v_mov_b32 v3, s{SB+2*i+1}")
            a(f"buffer_store_dwordx2 v[2:3], v1, s[44:47], s48 offen offset:{8*i}")
            a("s_nop 1")
    a.label("L_END")
    a("s_endpgm")
    return a.text().replace('STUBS_HERE\n', stubs.text()), nv

DOC = """; ---------------------------------------------------------------------------------------------
;           gelu = x / (1 + exp2(x*(c0 + c1*x^2))) in fp32 and store bf16 h to d_ws in MFMA
; ---------------------------------------------------------------------------------------------
"""
def assemble_labels(text):
    import subprocess, re
    open("lay.s", "w").write(text)
    subprocess.run(["clang", "-x", "assembler", "-target", "amdgcn-amd-amdhsa", "-mcpu=gfx950", "-c", "lay.s", "-o", "lay.o"], check=True)
    o = subprocess.run(["llvm-objdump", "-t", "lay.o"], capture_output=True, text=True).stdout
    return {m.group(2): int(m.group(1), 16) for m in re.finditer(r"^([0-9a-f]{16}) .*\.text\s+[0-9a-f]+ (?:\.\w+ )?(\S+)$", o, re.M)}

def build(out, align=True, shift=0, **kw):
    k, nv = gen(**kw)
    def full(pad):
        s = HEADER + "; @launch grid=(256,1,1) block=(512,1,1) lds=163840\n" + DOC
        s += '.amdgcn_target "amdgcn-amd-amdhsa--gfx950"\n.text\n'
        if align: s += ".p2align 12\n"
        s += kernel_start(NAME) + k.replace("PAD_HERE\n", f"    ; unreachable gap (s_endpgm words): keeps 4 KiB code-page crossings off the critical path\n.fill {pad}, 4, 0xbf810000\n" if pad else "")
        s += '.section .rodata,"a"\n' + kernel_desc(NAME, nv, 102)
        return s
    pad = 0
    if align:
        L = assemble_labels(full(0))
        c2 = L["L_C2"] - L[NAME]
        pad = (((-c2) % 4096) + shift) // 4
        L = assemble_labels(full(pad))
        print({n: hex(L[n] - L[NAME]) for n in ("L_NOFLAG", "L_PAD", "L_C", "L_NOLEAD2", "L_PN", "L_C2", "L_GO", "L_END")})
    open(out, "w").write(full(pad))
    print(out, "vgprs", nv)

if __name__ == "__main__":
    build("v35.s"); build("v35p.s", prof=1)
```

```python
import sys, math
from asmlib import *
from gen_v3 import gelu8_pk, gelu8_sc

MB_BYTES = 86 * 1024
MBS = 88 * 1024
H_BYTES = 64 * MBS
C0 = -2.0 * math.sqrt(2.0 / math.pi) * math.log2(math.e)
C1 = C0 * 0.044715
NAME = "standalone__dense_activation_gelu__prompt_kernel"
SLOT = 28672
DBASE = 4 * SLOT
NST = 16
LIM = 0x100000

def w2_lds(pos):
    if pos == 10: pos = 0
    if pos < 3:
        return DBASE + pos * 16384
    return (pos - 3) * 16384

def grp(pos, kq):
    i = 4 * pos + kq
    p = (i >= 15) + (i >= 29)
    ft = i - (0, 15, 29)[p]
    return ft, p, 3 * ft + p
STG = [0]*3 + [1]*4 + [2]*4
def mask(kq, st):
    m = 0
    for pos in range(11):
        ft, p, g = grp(pos, kq)
        if STG[pos] == st and g < 43: m |= 1 << ft
    return m

class Cnt:
    def __init__(self): self.q = []
    def issue(self, tag, n=1): self.q += [tag] * n
    def need(self, tag):
        idx = max(i for i, t in enumerate(self.q) if t == tag)
        return len(self.q) - 1 - idx

def gen(prof=0, PF=6, psleep=2, lsp=(1,2,3,4), staged=False, f1at=4, cpf=False, p2at=9, LA=11, pre1=11, bat=0, early=5, ldel=0, late_st=False, rsplit=4, deep=True, prio2=None, bs_at=5, trot=0, npz=0, tthr=4, npoll=1, pgap=4, nfd=0, d14=0, rot='r2', lmall=True, oaux='sc1', bf=None, prioC=None, mb=6, gsp=12):
    a = Asm(); stubs = Asm()
    SB = 70
    def stamp(i):
        if prof == 1 or (prof >= 3 and i == 0):
            a(f"s_memrealtime s[{SB+2*i}:{SB+2*i+1}]")
    def fstamp(i):
        if prof == 2:
            a(f"s_memrealtime s[{SB+2*i}:{SB+2*i+1}]")
    def gst(i, cyc=False):
        if prof == 4:
            a(f"{'s_memtime' if cyc else 's_memrealtime'} s[{SB+2*i}:{SB+2*i+1}]")
    def xst(i):
        if prof == 3:
            a(f"s_memrealtime s[{SB+2*i}:{SB+2*i+1}]")
    a("s_load_dwordx16 s[8:23], s[0:1], 0")
    stamp(0)
    if prof == 3:
        for i in range(2, 32): a(f"s_mov_b32 s{SB+i}, 0")
    a("s_cmp_ge_u32 s2, 256")
    a("s_cbranch_scc1 L_END")
    a("""v_lshrrev_b32 v2, 6, v0
    v_and_b32 v1, 63, v0
    s_and_b32 s3, s2, 7
    v_readfirstlane_b32 s7, v2
    s_bfe_u32 s4, s2, 0x30003
    s_lshr_b32 s5, s2, 6
    s_and_b32 s6, s3, 3
    s_lshl_b32 s30, s5, 2
    s_add_u32 s6, s6, s30
    s_lshr_b32 s24, s3, 2
    s_lshl_b32 s24, s24, 3
    s_add_u32 s24, s24, s4
    s_and_b32 s28, s7, 3
    v_and_b32 v2, 3, v2
    s_cmp_lt_u32 s7, 4
    s_cbranch_scc1 L_C""")
    vLane = 1; vQ = 2
    R = RegAlloc(3)
    t0 = R.alloc(); t1 = R.alloc(); t2 = R.alloc()
    vAW2 = R.alloc(12); vOH = R.alloc(); vOH2 = vOH; vRW = R.alloc(2); vRR = R.alloc(2); vOO = R.alloc(); vN = R.alloc(); vNA = R.alloc(); vFA = R.alloc()
    vF = R.alloc(2); vD = R.alloc()
    vb2 = R.alloc(4, 4); vbf = R.alloc(8, 2)
    base = R.n
    R1 = RegAlloc(base)
    vAX = R1.alloc(4); vAW = R1.alloc(4); vFS = R1.alloc(); vFV = R1.alloc(3); vC0 = R1.alloc(2, 2)
    acc = R1.alloc(48, 4)
    fx = [R1.alloc(8, 4) for _ in range(2)]
    fw = [R1.alloc(12, 4) for _ in range(3)]
    T = R1.alloc(8, 4); O = [R1.alloc(4, 4) for _ in range(6)]
    RL = RegAlloc(base)
    vOX = RL.alloc(4); vOW = RL.alloc(3); vOW2 = RL.alloc(4)
    assert RL.n <= acc
    R2 = RegAlloc(R1.n)
    acc2 = R2.alloc(32, 4)
    fw2 = [R2.alloc(8, 4) for _ in range(2)]
    st0 = R2.alloc(16, 4)
    lastbuf = acc2
    R2b = RegAlloc(acc)
    fh = [R2b.alloc(4, 4) for _ in range(22)]
    assert R2b.n <= T
    nv = R2.n

    def common_setup():
        a("""s_add_u32 s30, s3, 1
        s_and_b32 s30, s30, 3
        s_lshl_b32 s30, s30, 1
        s_lshl_b32 s25, s5, 3
        s_add_u32 s25, s25, s30
        s_lshr_b32 s30, s3, 2
        s_add_u32 s25, s25, s30
        s_lshr_b32 s29, s7, 2
        s_lshl_b32 s26, s28, 12
        s_mul_i32 s27, s28, 11""")
        a(f"""v_lshrrev_b32 v{t0}, 2, v{vLane}
        v_lshlrev_b32 v{t0}, 7, v{t0}
        v_bfe_u32 v{t1}, v{vLane}, 3, 2
        v_lshl_add_u32 v{t0}, v{t1}, 5, v{t0}
        v_and_b32 v{t1}, 3, v{vLane}
        v_lshl_add_u32 v{t0}, v{t1}, 3, v{t0}
        v_lshl_add_u32 v{vAW2}, v{vQ}, 12, v{t0}
        v_xor_b32 v{vAW2+1}, 32, v{vAW2}
        v_xor_b32 v{vAW2+2}, 64, v{vAW2}
        v_xor_b32 v{vAW2+3}, 0x60, v{vAW2}
        v_add_u32 v{vAW2+4}, 65536, v{vAW2}
        v_add_u32 v{vAW2+5}, 65536, v{vAW2+1}
        v_add_u32 v{vAW2+6}, 65536, v{vAW2+2}
        v_add_u32 v{vAW2+7}, 65536, v{vAW2+3}
        v_add_u32 v{vAW2+8}, 131072, v{vAW2}
        v_add_u32 v{vAW2+9}, 131072, v{vAW2+1}
        v_add_u32 v{vAW2+10}, 131072, v{vAW2+2}
        v_add_u32 v{vAW2+11}, 131072, v{vAW2+3}
        v_lshlrev_b32 v{vOH}, 4, v{vLane}
        s_cmp_eq_u32 s29, 0
        s_cselect_b32 s30, {DBASE + 16384}, 0
        v_and_b32 v{t0}, 15, v{vLane}
        v_lshrrev_b32 v{t1}, 4, v{vLane}
        v_and_b32 v{t2}, 7, v{vLane}
        v_xor_b32 v{t1}, v{t1}, v{t2}
        v_lshlrev_b32 v{t1}, 4, v{t1}
        v_lshl_add_u32 v{t1}, v{t0}, 8, v{t1}
        v_lshl_add_u32 v{t1}, v{vQ}, 13, v{t1}
        v_add_u32 v{vRW}, s30, v{t1}
        v_xor_b32 v{vRW+1}, 64, v{vRW}
        v_lshrrev_b32 v{t0}, 3, v{vLane}
        v_lshlrev_b32 v{t1}, 1, v{t2}
        v_xor_b32 v{t1}, v{t1}, v{t0}
        v_lshlrev_b32 v{t1}, 4, v{t1}
        v_lshl_add_u32 v{t0}, v{vQ}, 3, v{t0}
        v_lshl_add_u32 v{t1}, v{t0}, 8, v{t1}
        v_add_u32 v{vRR}, s30, v{t1}
        v_xor_b32 v{vRR+1}, 16, v{vRR}
        v_lshlrev_b32 v{t2}, 4, v{t2}
        v_lshl_add_u32 v{vOO}, v{t0}, 10, v{t2}
        v_and_b32 v{t0}, 31, v{vLane}
        v_lshlrev_b32 v{vNA}, 2, v{t0}
        v_and_b32 v{vFA}, 15, v{vLane}
        v_lshlrev_b32 v{vFA}, 2, v{vFA}
        s_lshl_b32 s30, s25, 1
        s_add_u32 s30, s30, s29
        s_mul_i32 s68, s30, {MBS}
        s_lshl_b32 s69, s4, 7
        s_lshl_b32 s67, s30, 15
        s_add_u32 s67, s67, s69""")
    def goff(pos, shift, dst):
        a(f"s_add_u32 {dst}, s27, {pos}")
        a(f"s_lshl_b32 {dst}, {dst}, {shift}")
    def common_srds():
        a(f"""s_mov_b32 s40, s22
        s_mov_b32 s41, s23
        s_mov_b32 s42, {H_BYTES}
        s_mov_b32 s43, 0x20000
        s_mov_b32 s44, s20
        s_mov_b32 s45, s21
        s_mov_b32 s46, 256
        s_mov_b32 s47, 0x20000
        s_add_u32 s52, s18, s67
        s_addc_u32 s53, s19, 0
        s_sub_u32 s54, 2097152, s67
        s_mov_b32 s55, 0x20000""")
    def b2_load():
        a("""s_mov_b32 s32, s16
        s_mov_b32 s33, s17
        s_mov_b32 s34, 1024
        s_mov_b32 s35, 0x20000""")
        a(f"v_and_b32 v{t1}, 7, v{vLane}")
        a(f"v_lshlrev_b32 v{t1}, 4, v{t1}")
        a(f"buffer_load_dwordx4 {vr(vb2,4)}, v{t1}, s[32:35], s69 offen")
    def WS(pos):
        return [st0, fw2[0], O[0]][pos % 3] if deep else (st0 if pos % 2 == 0 else fw2[0])
    def wrd(pos):
        off = w2_lds(pos); k = off >> 16; off -= k << 16
        W = WS(pos)
        return [f"ds_read_b64_tr_b16 {vr(W+4*o+2*q,2)}, v{vAW2+4*k+o} offset:{off+q*2048}" for o in range(4) for q in range(2)]
    def stage0():
        for x in wrd(0): a(x)
    def ph2_scalars():
        a(f"s_add_u32 s63, s68, {MB_BYTES}")
        a("s_add_u32 s36, s22, s68")
        a("s_addc_u32 s37, s23, 0")
        a(f"s_mov_b32 s38, {MB_BYTES}")
        a("s_mov_b32 s39, 0x20000")
        a("s_lshl_b32 s31, s28, 4")
        a("s_mov_b32 s60, 0x00f8000f")
        a("s_mov_b32 s61, 0x78000780")
        a("s_lshr_b64 s[60:61], s[60:61], s31")
        a(f"s_and_b32 s56, s60, 0xffff")
    def acc2_zero():
        pass
    def acc2_bias():
        for i in range(4):
            a(f"v_lshlrev_b32 v{vbf+2*i}, 16, v{vb2+i}")
            a(f"v_and_b32 v{vbf+2*i+1}, 0xffff0000, v{vb2+i}")
    def poll_issue(k, o=a):
        o(f"buffer_load_dword v{vF+k}, v{vFA}, s[40:43], s63 offen sc1")
    def chk(k, st, o=a):
        lvl = st + 1 if staged else 3
        o(f"v_subrev_u32 v{vD}, s62, v{vF+k}")
        o(f"v_subrev_u32 v{vD}, {lvl}, v{vD}")
        o(f"v_cmp_ge_u32 vcc, {3-lvl}, v{vD}")
        o("s_nop 1")
        o(f"s_and_b32 s31, vcc_lo, s{56+st}")
        o(f"s_cmp_eq_u32 s31, s{56+st}")

    a.c("loader waves")
    a({"r2": """s_add_u32 s62, s5, s4
    s_and_b32 s62, s62, 1
    s_lshl_b32 s62, s62, 2
    s_lshr_b32 s30, s3, 2
    s_add_u32 s30, s30, s3
    s_and_b32 s30, s30, 1
    s_lshl_b32 s30, s30, 1
    s_add_u32 s62, s62, s30""",
       "none": "s_mov_b32 s62, 4",
       "xcd": "s_mov_b32 s62, s3",
       "cu": "s_lshl_b32 s62, s5, 1\ns_add_u32 s62, s62, s4\ns_and_b32 s62, s62, 7",
       "r2b": "s_add_u32 s62, s5, s4\ns_and_b32 s62, s62, 1\ns_lshl_b32 s62, s62, 2\ns_add_u32 s62, s62, s3\ns_and_b32 s62, s62, 7",
       "r4": "s_add_u32 s62, s5, s4\ns_and_b32 s62, s62, 3\ns_lshl_b32 s62, s62, 1",
       "r1": "s_add_u32 s62, s5, s4\ns_and_b32 s62, s62, 1\ns_add_u32 s62, s62, 4",
       }[rot])
    a(f"""v_lshrrev_b32 v{t0}, 3, v{vLane}
    v_lshl_add_u32 v{t0}, v{vQ}, 5, v{t0}
    v_lshlrev_b32 v{t0}, 10, v{t0}
    v_lshrrev_b32 v{t1}, 4, v{vLane}
    v_and_b32 v{t2}, 7, v{vLane}
    v_xor_b32 v{t1}, v{t1}, v{t2}
    v_lshl_add_u32 v{vOX}, v{t1}, 4, v{t0}
    v_xor_b32 v{t1}, 4, v{t1}
    v_lshl_add_u32 v{vOX+1}, v{t1}, 4, v{t0}
    v_add_u32 v{vOX+1}, {8192-1024}, v{vOX+1}
    v_add_u32 v{vOX+2}, {2*(8192-1024)}, v{vOX}
    v_add_u32 v{vOX+3}, {2*(8192-1024)}, v{vOX+1}
    s_nop 0""")
    def w1calc():
        a(f"""v_mul_u32_u24 v{t0}, 192, v{vQ}
        v_add_u32 v{t0}, v{t0}, v{vLane}""")
        for j in range(3):
            if j:
                a(f"v_add_u32 v{t0}, 64, v{t0}")
            a(f"v_mul_u32_u24 v{t1}, 43691, v{t0}")
            a(f"v_lshrrev_b32 v{t1}, 19, v{t1}")
            a(f"v_mul_u32_u24 v{t2}, 12, v{t1}")
            a(f"v_sub_u32 v{t2}, v{t0}, v{t2}")
            a(f"v_lshrrev_b32 v{vN}, 2, v{t1}")
            a(f"v_and_b32 v{vN}, 2, v{vN}")
            a(f"v_xor_b32 v{t2}, v{t2}, v{vN}")
            a(f"v_mul_u32_u24 v{t1}, 2752, v{t1}")
            a(f"v_lshl_add_u32 v{vOW+j}, v{t2}, 4, v{t1}")
            if j:
                a(f"v_subrev_u32 v{vOW+j}, {1024*j}, v{vOW+j}")
    a("""s_lshl_b32 s56, s28, 12
    s_lshl_b32 s59, s6, 17
    s_cmp_eq_u32 s24, 15
    s_cselect_b32 s34, 0, 131072
    s_mov_b32 s35, 0x20000
    s_waitcnt lgkmcnt(0)""")
    stamp(1); xst(1)
    a("""s_add_u32 s32, s8, s59
    s_addc_u32 s33, s9, 0""")
    def w1srd():
        a("""s_mul_i32 s57, s28, 3072
        s_add_u32 s57, s57, 16384
        s_mul_i32 s58, s24, 192
        s_sub_u32 s38, 1409024, s58
        s_cmp_eq_u32 s24, 15
        s_cselect_b32 s38, 0, s38
        s_mov_b32 s39, 0x20000
        s_add_u32 s36, s10, s58
        s_addc_u32 s37, s11, 0""")
    items = []
    for c in range(8):
        slot = c % 4
        for j in range(7):
            l = []
            if j == 0:
                l += [f"s_add_u32 m0, s56, {slot*SLOT}", "s_lshl_b32 s63, s62, 7"]
            if j == 4:
                l += [f"s_add_u32 m0, s57, {slot*SLOT}", "s_mul_i32 s63, s62, 176128", "s_add_u32 s62, s62, 1", "s_and_b32 s62, s62, 7"]
            if j < 4: l.append(f"buffer_load_dwordx4 v{vOX+j}, s[32:35], s63 offen offset:{1024*j} lds")
            else: l.append(f"buffer_load_dwordx4 v{vOW+j-4}, s[36:39], s63 offen offset:{1024*(j-4)} lds")
            items.append((l, f"c{c}", c - 3))
    W2B = {0: -9, 1: -9, 2: -9, 3: 5, 4: 6, 5: 6, 6: 7, 7: 7}
    for pos in range(early):
        for j in range(4):
            items.append((("W2", pos, j), f"p{pos}", W2B[pos]))
    vmL = Cnt(); ptr = [0]
    def emit(n, bar):
        while ptr[0] < min(n, len(items)) and items[ptr[0]][2] <= bar:
            l, tag, _ = items[ptr[0]]
            if l[0] == "W2":
                _, pos, j = l
                if j == 0:
                    a(f"s_add_u32 m0, s26, {w2_lds(pos)}")
                    goff(pos, 15, "s66")
                a(f"buffer_load_dwordx4 v{vOW2+j}, s[48:51], s66 offen offset:{1024*j} lds")
            else:
                for x in l: a(x)
            vmL.issue(tag); ptr[0] += 1
    def dma2(pos):
        a(f"s_add_u32 m0, s26, {w2_lds(pos)}")
        goff(pos, 15, "s66")
        for j in range(4):
            a(f"buffer_load_dwordx4 v{vOW2+j}, s[48:51], s66 offen offset:{1024*j} lds")
    emit(4, -1)
    w1calc(); w1srd()
    emit(pre1, -1); xst(2)
    common_setup()
    common_srds()
    a(f"""v_lshrrev_b32 v{t0}, 3, v{vLane}
    v_bfe_u32 v{t1}, v{vLane}, 4, 2
    v_lshlrev_b32 v{t1}, 1, v{t1}
    v_and_b32 v{t2}, 7, v{vLane}
    v_xor_b32 v{t1}, v{t1}, v{t2}
    v_lshlrev_b32 v{t0}, 10, v{t0}
    v_lshl_add_u32 v{vOW2}, v{t1}, 4, v{t0}""")
    for j in range(1, 4):
        a(f"v_add_u32 v{vOW2+j}, {j*(8192-1024)}, v{vOW2}")
    a("""s_lshl_b32 s30, s4, 7
    s_add_u32 s48, s14, s30
    s_addc_u32 s49, s15, 0
    s_sub_u32 s50, 1409024, s30
    s_mov_b32 s51, 0x20000""")
    if lsp:
        a("""s_lshl_b32 s30, s2, 2
        s_add_u32 s30, s30, s28
        s_mul_i32 s30, s30, 1376
        s_and_b32 s30, s30, 0xffffffc0
        s_add_u32 s58, s14, s30
        s_addc_u32 s59, s15, 0
        s_lshr_b32 s30, s2, 3
        s_mul_i32 s30, s30, 43
        s_mul_i32 s31, s28, 11
        s_add_u32 s30, s30, s31
        s_min_u32 s30, s30, 1365
        s_lshl_b32 s30, s30, 10
        s_add_u32 s60, s14, s30
        s_addc_u32 s61, s15, 0""")
        lds_ = []
        for i in range(22):
            lds_.append(f"s_load_dword s31, s[60:61], {(i//2)*1024+384+(i&1)*64}")
            if lmall: lds_.append(f"s_load_dword s31, s[58:59], {min(i*64, 1372)}")
        per = (len(lds_) + len(lsp) - 1) // len(lsp)
    xst(3)
    for i in range(8):
        la = LA[i] if isinstance(LA, (list, tuple)) else LA
        emit(7 * (i + 1) + la, i - 1)
        fstamp(2*i)
        a(f"s_waitcnt vmcnt({vmL.need(f'c{i}')})")
        fstamp(2*i+1)
        if i == 0: xst(4)
        a("s_barrier")
        if i == 0: stamp(2)
        if i == 7: stamp(3)
        if lsp and i in lsp:
            for x in lds_[lsp.index(i)*per:(lsp.index(i)+1)*per]: a(x)
    emit(999, 7)
    b2_load()
    stamp(4)
    a("s_waitcnt lgkmcnt(0)")
    if npz:
        a(f"s_add_u32 s30, s27, {early}")
        a("s_lshl_b32 s30, s30, 5")
        a("s_lshr_b32 s31, s2, 3")
        a(f"s_mul_i32 s31, s31, {(npz+15)//16}")
        a("s_add_u32 s30, s30, s31")
        a("s_min_u32 s30, s30, 1368")
        a("s_lshl_b32 s30, s30, 10")
        a("s_add_u32 s64, s14, s30")
        a("s_addc_u32 s65, s15, 0")
    a(f"buffer_load_dword v{vN}, v{vNA}, s[44:47], 0 offen sc1")
    ph2_scalars()
    for i in range(npz): a(f"s_load_dword s59, s[64:65], {i*64}")
    acc2_zero()
    a("s_waitcnt vmcnt(0)")
    acc2_bias()
    stage0()
    stamp(5); xst(12)
    a("s_barrier")
    stamp(6)
    if ldel: a(f"s_sleep {ldel}")
    if trot:
        n = 10 - early
        a(f"s_mul_i32 s64, s5, {trot}")
        for k in range(n):
            a(f"s_cmp_ge_u32 s64, {n}")
            a(f"s_cselect_b32 s65, {n}, 0")
            a("s_sub_u32 s64, s64, s65")
            a("s_lshl_b32 s65, s64, 14")
            a("s_add_u32 s65, s65, s26")
            a(f"s_add_u32 m0, s65, {w2_lds(early)}")
            a("s_add_u32 s66, s64, s27")
            a(f"s_add_u32 s66, s66, {early}")
            a("s_lshl_b32 s66, s66, 15")
            for j in range(4):
                a(f"buffer_load_dwordx4 v{vOW2+j}, s[48:51], s66 offen offset:{1024*j} lds")
            a("s_add_u32 s64, s64, 1")
    else:
        for pos in range(early, 10):
            if tthr is not None and pos > early: a(f"s_waitcnt vmcnt({tthr})")
            dma2(pos)
    poll_issue(0)
    a("s_waitcnt lgkmcnt(0)" if mb == 6 else "s_waitcnt vmcnt(1) lgkmcnt(0)")
    a("s_barrier")
    dma2(10)
    poll_issue(1)
    a("s_waitcnt vmcnt(5)")
    a("s_branch L_PHASE2")

    a.label("L_NOFLAG")
    a("s_waitcnt vmcnt(0) lgkmcnt(0)")
    a("s_barrier")
    stage0()
    acc2_zero(); acc2_bias()
    a("s_branch L_C2")
    a.raw("STUBS_HERE")
    a.label("L_PAD")
    a.raw("PAD_HERE")
    a.label("L_C")
    xst(5)
    common_setup()
    bA = acc2; bB = acc2 + 4
    for i in range(24): a(f"v_mov_b32 v{bB+i}, 0")
    a(f"""v_and_b32 v{t0}, 15, v{vLane}
    v_lshrrev_b32 v{t2}, 4, v{vLane}
    v_lshrrev_b32 v{t1}, 1, v{t0}
    v_xor_b32 v{t1}, v{t1}, v{t2}
    v_lshlrev_b32 v{t1}, 4, v{t1}
    v_lshl_add_u32 v{t1}, v{t0}, 7, v{t1}
    v_lshl_add_u32 v{vAX}, v{vQ}, 12, v{t1}
    v_xor_b32 v{vAX+1}, 64, v{vAX}
    v_add_u32 v{vAX+2}, {2*SLOT}, v{vAX}
    v_add_u32 v{vAX+3}, {2*SLOT}, v{vAX+1}
    v_lshrrev_b32 v{t1}, 2, v{t0}
    v_lshl_add_u32 v{t1}, v{t2}, 3, v{t1}
    v_mul_u32_u24 v{t1}, 192, v{t1}
    v_and_b32 v{t0}, 3, v{vLane}
    v_lshl_add_u32 v{t1}, v{t0}, 3, v{t1}
    v_add_u32 v{t1}, 16384, v{t1}
    v_and_b32 v{t0}, 1, v{t2}
    v_lshlrev_b32 v{t0}, 5, v{t0}
    v_add_u32 v{vAW}, v{t1}, v{t0}
    v_sub_u32 v{vAW+1}, v{t1}, v{t0}
    v_add_u32 v{vAW+2}, {2*SLOT}, v{vAW}
    v_add_u32 v{vAW+3}, {2*SLOT}, v{vAW+1}
    v_mov_b32 v{bA+2}, 0
    v_mov_b32 v{bA+3}, 0
    v_mov_b32 v{t0}, 0x3f80""")
    for g in range(4):
        a(f"v_cmp_eq_u32 vcc, {g}, v{t2}")
        a("s_nop 1")
        a(f"v_cndmask_b32 v{bB+4*g}, 0, v{t0}, vcc")
    a(f"v_mov_b32 v{bB+17}, v{bB}")
    a(f"v_mov_b32 v{bB+21}, v{bB+4}")
    a(f"""s_nop 0
    v_mov_b32 v{vC0}, 0x{f32bits(C0):08x}
    v_mov_b32 v{vC0+1}, 0x{f32bits(C0):08x}
    s_mov_b32 s48, 0x{f32bits(C1):08x}
    s_mov_b32 s49, 0x{f32bits(C1):08x}
    v_bfe_u32 v{t0}, v{vLane}, 4, 1
    v_mul_u32_u24 v{t0}, {MBS}, v{t0}
    v_add_u32 v{t0}, v{t0}, v{vFA}
    v_lshlrev_b32 v{t2}, 1, v{vLane}
    v_lshlrev_b32 v{vFS}, 24, v{vLane}
    s_mul_i32 s58, s24, 192
    s_lshl_b32 s59, s6, 2
    s_add_u32 s59, s59, s7
    s_mul_i32 s62, s59, {MBS}
    s_mul_i32 s61, s24, 6144
    s_add_u32 s50, s62, s61
    s_add_u32 s51, s50, 4096
    s_lshl_b32 s63, s24, 2
    s_add_u32 s62, s62, s63
    s_add_u32 s66, s62, {MB_BYTES}
    s_mul_i32 s63, s25, {2*MBS}
    s_add_u32 s63, s63, {MB_BYTES}
    s_lshr_b32 s59, s59, 1
    s_waitcnt lgkmcnt(0)""")
    stamp(1); xst(6)
    a(f"""s_mov_b32 s32, s12
    s_mov_b32 s33, s13
    s_mov_b32 s34, 2752
    s_mov_b32 s35, 0x20000
    buffer_load_ushort v{bA}, v{t2}, s[32:35], s58 offen
    buffer_load_ushort v{bA+1}, v{t2}, s[32:35], s58 offen offset:128""")
    common_srds()
    a(f"""s_or_b32 s61, s4, s7
    s_cmp_lg_u32 s61, 0
    s_cbranch_scc1 L_NOLEAD
    buffer_load_dword v{vF}, v{t0}, s[40:43], s63 offen sc1
    v_bfe_u32 v{t1}, v{vLane}, 4, 1
    v_sub_u32 v{t1}, v{vLane}, v{t1}
    v_add_u32 v{t1}, 2, v{t1}
    s_nop 0""")
    a.label("L_NOLEAD")
    xst(7)
    def lead2():
        a(f"""s_or_b32 s61, s4, s7
        s_cmp_lg_u32 s61, 0
        s_cbranch_scc1 L_NOLEAD2
        v_bfe_u32 v{t1}, v{vLane}, 4, 1
        v_sub_u32 v{t1}, v{vLane}, v{t1}
        v_add_u32 v{t1}, 2, v{t1}
        v_lshrrev_b32 v{t1}, v{t1}, v{vF}
        v_and_b32 v{t1}, 1, v{t1}
        v_cmp_eq_u32 vcc, 0, v{t1}
        s_lshl_b32 s30, s25, 2
        s_nop 0
        s_and_b32 s31, vcc_lo, 0x7fff
        s_lshl_b32 s31, s31, 2
        s_and_b32 s61, vcc_lo, 0x7fff0000
        s_lshl_b32 s61, s61, 1
        s_or_b32 s31, s31, s61
        s_or_b32 s31, s31, 1
        v_mov_b32 v{t1}, s31
        buffer_store_dword v{t1}, v{vFS}, s[44:47], s30 offen sc1""")
        a.label("L_NOLEAD2")
    ph2_scalars()
    a("s_mov_b32 s67, 0")
    AC = lambda P, mi: vr(acc + 16*(P>>1) + 8*mi + 4*(P&1), 4)
    def rd(u):
        c = u >> 2; t = (u >> 1) & 1; hf = u & 1
        slot = c % 4; hi = slot >> 1; off = (slot & 1) * SLOT
        W = [f"ds_read_b64_tr_b16 {vr(fw[u%3]+4*p+2*q,2)}, v{vAW+2*hi+((3*hf+p)&1)} offset:{off+t*6144+q*768+(3*hf+p)*32}" for p in range(3) for q in range(2)]
        if hf: return W
        X = [f"ds_read_b128 {vr(fx[t]+4*mi,4)}, v{vAX+2*hi+t} offset:{off+mi*2048}" for mi in range(2)]
        return [X[0]] + W[:2] + [X[1]] + W[2:]
    def mf(u, z=False):
        t = (u >> 1) & 1; hf = u & 1
        return [f"v_mfma_f32_16x16x32_bf16 {AC(3*hf+p,mi)}, {vr(fw[u%3]+4*p,4)}, {vr(fx[t]+4*mi,4)}, {'0' if z else AC(3*hf+p,mi)}" for p in range(3) for mi in range(2)]
    def inter(m, r):
        r = list(r)
        for i, x in enumerate(m):
            a(x)
            for _ in range(2 if (len(r) > len(m) - i - 1) else 1):
                if r: a(r.pop(0))
        assert not r
    vm = Cnt()
    def hstore(idx):
        so = "s50" if idx < 4 else "s51"
        if idx == 5: gst(8)
        if late_st:
            if idx < 5:
                gst(2 + idx); return
            for k in range(5):
                a(f"buffer_store_dwordx4 {vr(O[k],4)}, v{vOH}, s[40:43], {'s50' if k < 4 else 's51'} offen offset:{(k%4)*1024} sc1")
        a(f"buffer_store_dwordx4 {vr(O[idx],4)}, v{vOH}, s[40:43], {so} offen offset:{(idx%4)*1024} sc1")
        vm.issue(f"st{idx}")
        gst(2 + idx)
        if idx == 5: gst(10, True)
    def flag(lvl):
        a(f"buffer_store_dword v{vFV+lvl-1}, v{vFS}, s[40:43], s66 offen sc1")
        vm.issue(f"f{lvl}")
    xst(8)
    for c in range(7):
        fstamp(2*c)
        a("s_barrier")
        fstamp(2*c+1)
        if c == 0: stamp(2)
        if c == 5:
            a(f"buffer_load_dword v{vN}, v{vNA}, s[44:47], 0 offen sc1")
            b2_load()
        u = 4 * c
        for x in rd(u): a(x)
        if c >= 1:
            inter(mf(u - 1), rd(u + 1))
        else:
            for x in rd(u + 1): a(x)
        a("s_waitcnt lgkmcnt(6)")
        inter(mf(u, c == 0), rd(u + 2))
        a("s_waitcnt lgkmcnt(8)")
        inter(mf(u + 1, c == 0), rd(u + 3))
        a("s_waitcnt lgkmcnt(6)")
        for x in mf(u + 2): a(x)
        if c == bat:
            a("s_waitcnt vmcnt(0)")
            for P in range(6):
                for mi in range(2):
                    a(f"v_mfma_f32_16x16x32_bf16 {AC(P,mi)}, {vr(bA,4)}, {vr(bB+4*P,4)}, {AC(P,mi)}")
            lead2()
        a("s_waitcnt lgkmcnt(0)")
        if c == 6:
            for x in mf(27): a(x)
    fstamp(14)
    a("s_barrier")
    fstamp(15); gst(12); gst(13, True)
    stamp(3)
    LX = lambda t, mi: lastbuf + 8*t + 4*mi
    LW = lambda P, t: lastbuf + 16 + 8*P + 4*t
    lg = Cnt()
    def R(x, tag): a(x); lg.issue(tag)
    def rx(t, mi): R(f"ds_read_b128 {vr(LX(t,mi),4)}, v{vAX+2+t} offset:{SLOT+mi*2048}", f"x{t}{mi}")
    def rw(P, t):
        for q in range(2): R(f"ds_read_b64_tr_b16 {vr(LW(P,t)+2*q,2)}, v{vAW+2+(P&1)} offset:{SLOT+t*6144+q*768+P*32}", f"w{P}{t}")
    def m(P, t, mi): return f"v_mfma_f32_16x16x32_bf16 {AC(P,mi)}, {vr(LW(P,t),4)}, {vr(LX(t,mi),4)}, {AC(P,mi)}"
    def W(tag): a(f"s_waitcnt lgkmcnt({lg.need(tag)})")
    rx(0,0); rw(0,0); rw(1,0); rx(1,0); rw(0,1); rw(1,1); rx(0,1); rx(1,1)
    W("w10"); a(m(0,0,0)); a(m(1,0,0)); rw(2,0); rw(3,0)
    W("w11"); a(m(0,1,0)); a(m(1,1,0)); rw(2,1); rw(3,1)
    W("x11"); a(m(0,0,1)); rw(4,0); a(m(1,0,1)); rw(5,0); a(m(0,1,1)); a(m(1,1,1))
    W("w30"); rw(4,1); rw(5,1)
    stamp(4); xst(9); gst(1); gst(9, True)
    a("s_cmp_eq_u32 s24, 15")
    a("s_cbranch_scc1 L_NOFLAG")
    rest = [m(P,0,mi) for mi in range(2) for P in (2,3)] + ["W0"] + [m(P,1,mi) for mi in range(2) for P in (2,3)] + [m(P,t,mi) for t in range(2) for mi in range(2) for P in (4,5)]
    cost = 0; nxt = gsp
    for ins in gelu8_sc(acc, T, O[0], 48, vC0):
        a(ins)
        cost += 8 if ("exp" in ins or "rcp" in ins) else 4
        if cost >= nxt and rest:
            x = rest.pop(0)
            if x == "W0":
                a("s_waitcnt lgkmcnt(0)"); x = rest.pop(0)
            a(x); nxt = cost + gsp
    assert not rest
    hstore(0)
    for ins in gelu8_pk(acc + 8, T, O[1], 48, vC0): a(ins)
    hstore(1)
    a("s_waitcnt vmcnt(0)" if late_st else "s_waitcnt vmcnt(2)")
    a.label("L_PN")
    a(f"v_readlane_b32 s31, v{vN}, s59")
    a("s_add_u32 s67, s67, 1")
    a("s_nop 1")
    a("s_cmp_eq_u32 s31, 0")
    a("s_cbranch_scc1 L_PN_RETRY")
    a.label("L_PN_OK")
    stubs.label("L_PN_RETRY")
    stubs(f"s_cmp_gt_u32 s67, {LIM}")
    stubs("s_cbranch_scc1 L_PN_OK")
    stubs("s_sleep 16")
    stubs(f"buffer_load_dword v{vN}, v{vNA}, s[44:47], 0 offen sc1")
    stubs("s_waitcnt vmcnt(0)")
    stubs("s_branch L_PN")
    a(f"v_mov_b32 v{vFV}, s31")
    a(f"v_add_u32 v{vFV+1}, 1, v{vFV}")
    a(f"v_add_u32 v{vFV+2}, 2, v{vFV}")
    a("s_cmp_eq_u32 s24, 14")
    a("s_cbranch_scc1 L_ST14")
    stubs.label("L_ST14")
    if d14: stubs(f"s_sleep {d14}")
    stubs("s_barrier")
    stubs("s_branch L_LASTF")
    for idx in range(2, 6):
        for ins in gelu8_pk(acc + 8*idx, T, O[idx], 48, vC0): a(ins)
        hstore(idx)
        if idx == bs_at: a("s_barrier")
        if staged and idx == f1at:
            a(f"s_waitcnt vmcnt({vm.need('st1')})")
            flag(1)
    stamp(5); xst(10)
    if staged:
        a(f"s_waitcnt vmcnt({vm.need('st3')})")
        flag(2)
    a.label("L_LASTF")
    stage0()
    acc2_zero(); acc2_bias()
    a(f"s_waitcnt vmcnt(0)")
    stamp(6); xst(11); gst(11)
    flag(3)
    a.label("L_C2")
    poll_issue(1)
    a(f"v_mov_b32 v{vF}, 0")
    a("s_waitcnt lgkmcnt(0)")
    a("s_barrier")

    a.label("L_PHASE2")
    stamp(7)
    a("s_mov_b32 s67, 0")
    a.label("L_CN")
    a(f"v_readlane_b32 s62, v{vN}, s25")
    a("s_add_u32 s67, s67, 1")
    a("s_nop 1")
    a("s_cmp_eq_u32 s62, 0")
    a("s_cbranch_scc1 L_CN_RETRY")
    a.label("L_CN_OK")
    stubs.label("L_CN_RETRY")
    stubs(f"s_cmp_gt_u32 s67, {LIM}")
    stubs("s_cbranch_scc1 L_CN_OK")
    stubs("s_sleep 16")
    stubs(f"buffer_load_dword v{vN}, v{vNA}, s[44:47], 0 offen sc1")
    stubs("s_waitcnt vmcnt(0)")
    stubs("s_branch L_CN")
    a("s_sub_u32 s62, s62, 1")
    chk(0, 0)
    a("s_cbranch_scc1 L_GO")
    if npoll == 1:
        a.label("L_POLL")
        a(f"s_waitcnt vmcnt(0)")
        chk(1, 0)
        a("s_cbranch_scc1 L_GO")
        a("s_add_u32 s67, s67, 1")
        if psleep: a(f"s_sleep {psleep}")
        poll_issue(1)
        a(f"s_cmp_le_u32 s67, {LIM}")
        a("s_cbranch_scc1 L_POLL")
    else:
        order = list(range(1, npoll + 1))
        for k in order[1:]:
            poll_issue(k)
            if k != order[-1]: a(f"s_sleep {pgap}")
        a.label("L_POLL")
        for k in order:
            a(f"s_waitcnt vmcnt({npoll-1})")
            chk(k, 0)
            a("s_cbranch_scc1 L_GO")
            if psleep: a(f"s_sleep {psleep}")
            poll_issue(k)
        a("s_add_u32 s67, s67, 1")
        a(f"s_cmp_le_u32 s67, {LIM}")
        a("s_cbranch_scc1 L_POLL")
    a.label("L_GO")
    stamp(8)
    vm = Cnt(); lg = Cnt()
    order = list(range(16)) + [16, 18, 20, 17, 19, 21]
    def hload(s):
        if s < 16:
            if s % 2 == 0: goff(s >> 1, 11, "s66")
            so = "s66"; io = (s & 1) * 1024
        else:
            if s == 16:
                goff(8, 11, "s66"); a("s_add_u32 s64, s66, 4096")
            so = "s66" if s < 20 else "s64"; io = (s & 1) * 1024 + (2048 if s in (18, 19) else 0)
        a(f"buffer_load_dwordx4 {vr(fh[s],4)}, v{vOH2}, s[36:39], {so} offen offset:{io} sc1")
        vm.issue(f"h{s}")
    for k in range(PF): hload(order[k])
    for x in wrd(1): a(x)
    lg.issue("w1", 8)
    def M(pos, mi, o):
        ac = vr(acc2 + 8*o + 4*mi, 4)
        return f"v_mfma_f32_16x16x32_bf16 {ac}, {vr(WS(pos)+4*o,4)}, {vr(fh[2*pos+mi],4)}, {'0' if pos == 0 else ac}"
    def DW(o, mi):
        return f"ds_write_b128 v{vRW+(o&1)}, {vr(acc2+8*o+4*mi,4)} offset:{(o>>1)*128+mi*4096}"
    for k in range(19):
        s = order[k]; pos = s >> 1; mi = s & 1
        if s == mb:
            if mb <= 8: a("s_waitcnt lgkmcnt(0)")
            a("s_barrier")
        w = f"s_waitcnt vmcnt({vm.need(f'h{s}')})"
        if mi == 0 and pos >= 1: w += f" lgkmcnt({lg.need(f'w{pos}')})"
        a(w)
        if s == 0: stamp(9)
        r = wrd(pos + 2) if pos + 2 <= 10 else []
        if pos < 8: r = r[4*mi:4*mi+4]
        per_ = (len(r) + 3) // 4
        for o in range(4):
            a(M(pos, mi, o))
            for x in r[per_*o:per_*o+per_]:
                a(x); lg.issue(f"w{pos+2}")
        if k + PF < 22: hload(order[k + PF])
    a("s_waitcnt vmcnt(0)")
    stamp(10)
    seq = [M(8,1,0), M(9,1,0), M(10,1,0), M(8,1,1), DW(0,0), M(9,1,1), DW(1,0), M(10,1,1), DW(2,0), M(8,1,2), DW(3,0), M(9,1,2), DW(0,1),
           M(10,1,2), M(8,1,3), M(9,1,3), M(10,1,3), DW(1,1), "s_nop 3", DW(2,1), "s_nop 1", DW(3,1)]
    for x in seq: a(x)
    stamp(11)
    a("s_waitcnt lgkmcnt(0)")
    a("s_barrier")
    stamp(12)
    rdm = fh[0]
    for k in range(4):
        for e in range(2):
            a(f"ds_read_b128 {vr(rdm+8*k+4*e,4)}, v{vRR+e} offset:{k*8192}")
    for k in range(4):
        a(f"s_waitcnt lgkmcnt({6-2*k})")
        for i in range(0, 8, 2):
            a(f"v_pk_add_f32 {vr(vbf+i,2)}, {vr(vbf+i,2)}, {vr(rdm+8*k+i,2)}")
    od = fw2[0]
    for i in range(4):
        a(f"v_cvt_pk_bf16_f32 v{od+i}, v{vbf+2*i}, v{vbf+2*i+1}")
    a(f"buffer_store_dwordx4 {vr(od,4)}, v{vOO}, s[52:55], 0 offen {oaux}")
    if bf is not None:
        a("s_cmp_lg_u32 s29, 0")
        a("s_cbranch_scc1 L_NOBF2")
        a("s_barrier")
        a.label("L_NOBF2")
    if prof:
        stamp(13)
        a("s_waitcnt vmcnt(0)")
        stamp(14)
        a("s_waitcnt lgkmcnt(0)")
        if prof != 2:
            a(f"s_mov_b32 s{SB+30}, s67")
            a(f"s_mov_b32 s{SB+31}, 0")
        a(f"s_add_u32 s44, s22, {128<<20}")
        a(f"s_addc_u32 s45, s23, 0")
        a("s_mov_b32 s46, 0x1000000")
        a("s_mov_b32 s47, 0x20000")
        a("s_lshl_b32 s48, s2, 3")
        a("s_add_u32 s48, s48, s7")
        a(f"s_mul_i32 s48, s48, {NST*8}")
        a("v_mov_b32 v1, 0")
        for i in range(NST):
            a(f"v_mov_b32 v2, s{SB+2*i}")
            a(f"v_mov_b32 v3, s{SB+2*i+1}")
            a(f"buffer_store_dwordx2 v[2:3], v1, s[44:47], s48 offen offset:{8*i}")
            a("s_nop 1")
    a.label("L_END")
    a("s_endpgm")
    return a.text().replace('STUBS_HERE\n', stubs.text()), nv

DOC = """; ---------------------------------------------------------------------------------------------
;           gelu = x / (1 + exp2(x*(c0 + c1*x^2))) in fp32 and store bf16 h to d_ws in MFMA
; ---------------------------------------------------------------------------------------------
"""
def assemble_labels(text):
    import subprocess, re
    open("lay.s", "w").write(text)
    subprocess.run(["clang", "-x", "assembler", "-target", "amdgcn-amd-amdhsa", "-mcpu=gfx950", "-c", "lay.s", "-o", "lay.o"], check=True)
    o = subprocess.run(["llvm-objdump", "-t", "lay.o"], capture_output=True, text=True).stdout
    return {m.group(2): int(m.group(1), 16) for m in re.finditer(r"^([0-9a-f]{16}) .*\.text\s+[0-9a-f]+ (?:\.\w+ )?(\S+)$", o, re.M)}

def build(out, align=True, shift=0, **kw):
    k, nv = gen(**kw)
    def full(pad):
        s = HEADER + "; @launch grid=(256,1,1) block=(512,1,1) lds=163840\n" + DOC
        s += '.amdgcn_target "amdgcn-amd-amdhsa--gfx950"\n.text\n'
        if align: s += ".p2align 12\n"
        s += kernel_start(NAME) + k.replace("PAD_HERE\n", f"    ; unreachable gap (s_endpgm words): keeps 4 KiB code-page crossings off the critical path\n.fill {pad}, 4, 0xbf810000\n" if pad else "")
        s += '.section .rodata,"a"\n' + kernel_desc(NAME, nv, 102)
        return s
    pad = 0
    if align:
        L = assemble_labels(full(0))
        c2 = L["L_C2"] - L[NAME]
        pad = (((-c2) % 4096) + shift) // 4
        L = assemble_labels(full(pad))
        print({n: hex(L[n] - L[NAME]) for n in ("L_NOFLAG", "L_PAD", "L_C", "L_NOLEAD2", "L_PN", "L_C2", "L_GO", "L_END")})
    open(out, "w").write(full(pad))
    print(out, "vgprs", nv)

if __name__ == "__main__":
    build("v36.s"); build("v36p.s", prof=1); build("v36_g8.s", gsp=8); build("v36_g16.s", gsp=16)
```

```python
import sys, math
from asmlib import *
from gen_v3 import gelu8_pk, gelu8_sc

MB_BYTES = 86 * 1024
MBS = 88 * 1024
H_BYTES = 64 * MBS
C0 = -2.0 * math.sqrt(2.0 / math.pi) * math.log2(math.e)
C1 = C0 * 0.044715
NAME = "standalone__dense_activation_gelu__prompt_kernel"
SLOT = 28672
DBASE = 4 * SLOT
NST = 16
LIM = 0x100000

def w2_lds(pos):
    if pos == 10: pos = 0
    if pos < 3:
        return DBASE + pos * 16384
    return (pos - 3) * 16384

def grp(pos, kq):
    i = 4 * pos + kq
    p = (i >= 15) + (i >= 29)
    ft = i - (0, 15, 29)[p]
    return ft, p, 3 * ft + p
STG = [0]*3 + [1]*4 + [2]*4
def mask(kq, st):
    m = 0
    for pos in range(11):
        ft, p, g = grp(pos, kq)
        if STG[pos] == st and g < 43: m |= 1 << ft
    return m

class Cnt:
    def __init__(self): self.q = []
    def issue(self, tag, n=1): self.q += [tag] * n
    def need(self, tag):
        idx = max(i for i, t in enumerate(self.q) if t == tag)
        return len(self.q) - 1 - idx

def gen(prof=0, PF=6, psleep=2, lsp=(1,2,3,4), staged=False, f1at=4, cpf=False, p2at=9, LA=11, pre1=11, bat=0, early=5, ldel=0, late_st=False, rsplit=4, deep=True, prio2=None, bs_at=5, trot=0, npz=0, tthr=4, npoll=1, pgap=4, nfd=0, d14=0, rot='r2', lmall=True, oaux='sc1', bf=None, prioC=None, mb=6, gsp=12, remap=False, gmode=0, rep=1):
    a = Asm(); stubs = Asm()
    SB = 70
    def stamp(i):
        if prof == 1 or (prof >= 3 and i == 0):
            a(f"s_memrealtime s[{SB+2*i}:{SB+2*i+1}]")
    def fstamp(i):
        if prof == 2:
            a(f"s_memrealtime s[{SB+2*i}:{SB+2*i+1}]")
    def gst(i, cyc=False):
        if prof == 4:
            a(f"{'s_memtime' if cyc else 's_memrealtime'} s[{SB+2*i}:{SB+2*i+1}]")
    def xst(i):
        if prof == 3:
            a(f"s_memrealtime s[{SB+2*i}:{SB+2*i+1}]")
    a("s_load_dwordx16 s[8:23], s[0:1], 0")
    stamp(0)
    if prof == 3:
        for i in range(2, 32): a(f"s_mov_b32 s{SB+i}, 0")
    a("s_cmp_ge_u32 s2, 256")
    a("s_cbranch_scc1 L_END")
    a("""v_lshrrev_b32 v2, 6, v0
    v_and_b32 v1, 63, v0
    s_and_b32 s3, s2, 7
    v_readfirstlane_b32 s7, v2
    s_bfe_u32 s4, s2, 0x30003
    s_lshr_b32 s5, s2, 6
    s_and_b32 s6, s3, 3
    s_lshl_b32 s30, s5, 2
    s_add_u32 s6, s6, s30
    s_lshr_b32 s24, s3, 2
    s_lshl_b32 s24, s24, 3
    s_add_u32 s24, s24, s4
    REMAP
    s_and_b32 s28, s7, 3
    v_and_b32 v2, 3, v2
    s_cmp_lt_u32 s7, 4
    s_cbranch_scc1 L_C""".replace("    REMAP\n", """    s_lshr_b32 s30, s3, 2
    s_add_u32 s30, s30, s5
    s_and_b32 s30, s30, 1
    s_lshl_b32 s30, s30, 3
    s_add_u32 s30, s30, 7
    s_cmp_eq_u32 s4, 7
    s_cselect_b32 s24, s30, s24
""" if remap else ""))
    vLane = 1; vQ = 2
    R = RegAlloc(3)
    t0 = R.alloc(); t1 = R.alloc(); t2 = R.alloc()
    vAW2 = R.alloc(12); vOH = R.alloc(); vOH2 = vOH; vRW = R.alloc(2); vRR = R.alloc(2); vOO = R.alloc(); vN = R.alloc(); vNA = R.alloc(); vFA = R.alloc()
    vF = R.alloc(2); vD = R.alloc()
    vb2 = R.alloc(4, 4); vbf = R.alloc(8, 2)
    base = R.n
    R1 = RegAlloc(base)
    vAX = R1.alloc(4); vAW = R1.alloc(4); vFS = R1.alloc(); vFV = R1.alloc(3); vFR = vFV + 1; vC0 = R1.alloc(2, 2)
    acc = R1.alloc(48, 4)
    fx = [R1.alloc(8, 4) for _ in range(2)]
    fw = [R1.alloc(12, 4) for _ in range(3)]
    T = R1.alloc(8, 4); O = [R1.alloc(4, 4) for _ in range(6)]
    RL = RegAlloc(base)
    vOX = RL.alloc(4); vOW = RL.alloc(3); vOW2 = RL.alloc(4)
    assert RL.n <= acc
    R2 = RegAlloc(R1.n)
    acc2 = R2.alloc(32, 4)
    fw2 = [R2.alloc(8, 4) for _ in range(2)]
    st0 = R2.alloc(16, 4)
    lastbuf = acc2
    R2b = RegAlloc(acc)
    fh = [R2b.alloc(4, 4) for _ in range(22)]
    assert R2b.n <= T
    nv = R2.n

    def common_setup():
        a("""s_add_u32 s30, s3, 1
        s_and_b32 s30, s30, 3
        s_lshl_b32 s30, s30, 1
        s_lshl_b32 s25, s5, 3
        s_add_u32 s25, s25, s30
        s_lshr_b32 s30, s3, 2
        s_add_u32 s25, s25, s30
        s_lshr_b32 s29, s7, 2
        s_lshl_b32 s26, s28, 12
        s_mul_i32 s27, s28, 11""")
        a(f"""v_lshrrev_b32 v{t0}, 2, v{vLane}
        v_lshlrev_b32 v{t0}, 7, v{t0}
        v_bfe_u32 v{t1}, v{vLane}, 3, 2
        v_lshl_add_u32 v{t0}, v{t1}, 5, v{t0}
        v_and_b32 v{t1}, 3, v{vLane}
        v_lshl_add_u32 v{t0}, v{t1}, 3, v{t0}
        v_lshl_add_u32 v{vAW2}, v{vQ}, 12, v{t0}
        v_xor_b32 v{vAW2+1}, 32, v{vAW2}
        v_xor_b32 v{vAW2+2}, 64, v{vAW2}
        v_xor_b32 v{vAW2+3}, 0x60, v{vAW2}
        v_add_u32 v{vAW2+4}, 65536, v{vAW2}
        v_add_u32 v{vAW2+5}, 65536, v{vAW2+1}
        v_add_u32 v{vAW2+6}, 65536, v{vAW2+2}
        v_add_u32 v{vAW2+7}, 65536, v{vAW2+3}
        v_add_u32 v{vAW2+8}, 131072, v{vAW2}
        v_add_u32 v{vAW2+9}, 131072, v{vAW2+1}
        v_add_u32 v{vAW2+10}, 131072, v{vAW2+2}
        v_add_u32 v{vAW2+11}, 131072, v{vAW2+3}
        v_lshlrev_b32 v{vOH}, 4, v{vLane}
        s_cmp_eq_u32 s29, 0
        s_cselect_b32 s30, {DBASE + 16384}, 0
        v_and_b32 v{t0}, 15, v{vLane}
        v_lshrrev_b32 v{t1}, 4, v{vLane}
        v_and_b32 v{t2}, 7, v{vLane}
        v_xor_b32 v{t1}, v{t1}, v{t2}
        v_lshlrev_b32 v{t1}, 4, v{t1}
        v_lshl_add_u32 v{t1}, v{t0}, 8, v{t1}
        v_lshl_add_u32 v{t1}, v{vQ}, 13, v{t1}
        v_add_u32 v{vRW}, s30, v{t1}
        v_xor_b32 v{vRW+1}, 64, v{vRW}
        v_lshrrev_b32 v{t0}, 3, v{vLane}
        v_lshlrev_b32 v{t1}, 1, v{t2}
        v_xor_b32 v{t1}, v{t1}, v{t0}
        v_lshlrev_b32 v{t1}, 4, v{t1}
        v_lshl_add_u32 v{t0}, v{vQ}, 3, v{t0}
        v_lshl_add_u32 v{t1}, v{t0}, 8, v{t1}
        v_add_u32 v{vRR}, s30, v{t1}
        v_xor_b32 v{vRR+1}, 16, v{vRR}
        v_lshlrev_b32 v{t2}, 4, v{t2}
        v_lshl_add_u32 v{vOO}, v{t0}, 10, v{t2}
        v_and_b32 v{t0}, 31, v{vLane}
        v_lshlrev_b32 v{vNA}, 2, v{t0}
        v_and_b32 v{vFA}, 15, v{vLane}
        v_lshlrev_b32 v{vFA}, 2, v{vFA}
        s_lshl_b32 s30, s25, 1
        s_add_u32 s30, s30, s29
        s_mul_i32 s68, s30, {MBS}
        s_lshl_b32 s69, s4, 7
        s_lshl_b32 s67, s30, 15
        s_add_u32 s67, s67, s69""")
    def goff(pos, shift, dst):
        a(f"s_add_u32 {dst}, s27, {pos}")
        a(f"s_lshl_b32 {dst}, {dst}, {shift}")
    def common_srds():
        a(f"""s_mov_b32 s40, s22
        s_mov_b32 s41, s23
        s_mov_b32 s42, {H_BYTES + 64*4096}
        s_mov_b32 s43, 0x20000
        s_mov_b32 s44, s20
        s_mov_b32 s45, s21
        s_mov_b32 s46, 256
        s_mov_b32 s47, 0x20000
        s_add_u32 s52, s18, s67
        s_addc_u32 s53, s19, 0
        s_sub_u32 s54, 2097152, s67
        s_mov_b32 s55, 0x20000""")
    def b2_load():
        a("""s_mov_b32 s32, s16
        s_mov_b32 s33, s17
        s_mov_b32 s34, 1024
        s_mov_b32 s35, 0x20000""")
        a(f"v_and_b32 v{t1}, 7, v{vLane}")
        a(f"v_lshlrev_b32 v{t1}, 4, v{t1}")
        a(f"buffer_load_dwordx4 {vr(vb2,4)}, v{t1}, s[32:35], s69 offen")
    def WS(pos):
        return [st0, fw2[0], O[0]][pos % 3] if deep else (st0 if pos % 2 == 0 else fw2[0])
    def wrd(pos):
        off = w2_lds(pos); k = off >> 16; off -= k << 16
        W = WS(pos)
        return [f"ds_read_b64_tr_b16 {vr(W+4*o+2*q,2)}, v{vAW2+4*k+o} offset:{off+q*2048}" for o in range(4) for q in range(2)]
    def stage0():
        for x in wrd(0): a(x)
    def ph2_scalars():
        if rep:
            a("s_lshl_b32 s63, s25, 1\ns_add_u32 s63, s63, s29\ns_lshl_b32 s63, s63, 3\ns_add_u32 s63, s63, s4")
            if rep == 1: a("s_lshl_b32 s63, s63, 2\ns_add_u32 s63, s63, s28\ns_lshl_b32 s63, s63, 7")
            else: a("s_lshl_b32 s63, s63, 9")
            a(f"s_add_u32 s63, s63, {H_BYTES}")
        else:
            a(f"s_add_u32 s63, s68, {MB_BYTES}")
        a("s_add_u32 s36, s22, s68")
        a("s_addc_u32 s37, s23, 0")
        a(f"s_mov_b32 s38, {MB_BYTES}")
        a("s_mov_b32 s39, 0x20000")
        a("s_lshl_b32 s31, s28, 4")
        a("s_mov_b32 s60, 0x00f8000f")
        a("s_mov_b32 s61, 0x78000780")
        a("s_lshr_b64 s[60:61], s[60:61], s31")
        a(f"s_and_b32 s56, s60, 0xffff")
    def acc2_zero():
        pass
    def acc2_bias():
        for i in range(4):
            a(f"v_lshlrev_b32 v{vbf+2*i}, 16, v{vb2+i}")
            a(f"v_and_b32 v{vbf+2*i+1}, 0xffff0000, v{vb2+i}")
    def poll_issue(k, o=a):
        o(f"buffer_load_dword v{vF+k}, v{vFA}, s[40:43], s63 offen sc1")
    def chk(k, st, o=a):
        lvl = st + 1 if staged else 3
        o(f"v_subrev_u32 v{vD}, s62, v{vF+k}")
        o(f"v_subrev_u32 v{vD}, {lvl}, v{vD}")
        o(f"v_cmp_ge_u32 vcc, {3-lvl}, v{vD}")
        o("s_nop 1")
        o(f"s_and_b32 s31, vcc_lo, s{56+st}")
        o(f"s_cmp_eq_u32 s31, s{56+st}")

    a.c("loader waves")
    a({"r2": """s_add_u32 s62, s5, s4
    s_and_b32 s62, s62, 1
    s_lshl_b32 s62, s62, 2
    s_lshr_b32 s30, s3, 2
    s_add_u32 s30, s30, s3
    s_and_b32 s30, s30, 1
    s_lshl_b32 s30, s30, 1
    s_add_u32 s62, s62, s30""",
       "none": "s_mov_b32 s62, 4",
       "xcd": "s_mov_b32 s62, s3",
       "cu": "s_lshl_b32 s62, s5, 1\ns_add_u32 s62, s62, s4\ns_and_b32 s62, s62, 7",
       "r2b": "s_add_u32 s62, s5, s4\ns_and_b32 s62, s62, 1\ns_lshl_b32 s62, s62, 2\ns_add_u32 s62, s62, s3\ns_and_b32 s62, s62, 7",
       "r4": "s_add_u32 s62, s5, s4\ns_and_b32 s62, s62, 3\ns_lshl_b32 s62, s62, 1",
       "r1": "s_add_u32 s62, s5, s4\ns_and_b32 s62, s62, 1\ns_add_u32 s62, s62, 4",
       }[rot])
    a(f"""v_lshrrev_b32 v{t0}, 3, v{vLane}
    v_lshl_add_u32 v{t0}, v{vQ}, 5, v{t0}
    v_lshlrev_b32 v{t0}, 10, v{t0}
    v_lshrrev_b32 v{t1}, 4, v{vLane}
    v_and_b32 v{t2}, 7, v{vLane}
    v_xor_b32 v{t1}, v{t1}, v{t2}
    v_lshl_add_u32 v{vOX}, v{t1}, 4, v{t0}
    v_xor_b32 v{t1}, 4, v{t1}
    v_lshl_add_u32 v{vOX+1}, v{t1}, 4, v{t0}
    v_add_u32 v{vOX+1}, {8192-1024}, v{vOX+1}
    v_add_u32 v{vOX+2}, {2*(8192-1024)}, v{vOX}
    v_add_u32 v{vOX+3}, {2*(8192-1024)}, v{vOX+1}
    s_nop 0""")
    def w1calc():
        a(f"""v_mul_u32_u24 v{t0}, 192, v{vQ}
        v_add_u32 v{t0}, v{t0}, v{vLane}""")
        for j in range(3):
            if j:
                a(f"v_add_u32 v{t0}, 64, v{t0}")
            a(f"v_mul_u32_u24 v{t1}, 43691, v{t0}")
            a(f"v_lshrrev_b32 v{t1}, 19, v{t1}")
            a(f"v_mul_u32_u24 v{t2}, 12, v{t1}")
            a(f"v_sub_u32 v{t2}, v{t0}, v{t2}")
            a(f"v_lshrrev_b32 v{vN}, 2, v{t1}")
            a(f"v_and_b32 v{vN}, 2, v{vN}")
            a(f"v_xor_b32 v{t2}, v{t2}, v{vN}")
            a(f"v_mul_u32_u24 v{t1}, 2752, v{t1}")
            a(f"v_lshl_add_u32 v{vOW+j}, v{t2}, 4, v{t1}")
            if j:
                a(f"v_subrev_u32 v{vOW+j}, {1024*j}, v{vOW+j}")
    a("""s_lshl_b32 s56, s28, 12
    s_lshl_b32 s59, s6, 17
    s_cmp_eq_u32 s24, 15
    s_cselect_b32 s34, 0, 131072
    s_mov_b32 s35, 0x20000
    s_waitcnt lgkmcnt(0)""")
    stamp(1); xst(1)
    a("""s_add_u32 s32, s8, s59
    s_addc_u32 s33, s9, 0""")
    def w1srd():
        a("""s_mul_i32 s57, s28, 3072
        s_add_u32 s57, s57, 16384
        s_mul_i32 s58, s24, 192
        s_sub_u32 s38, 1409024, s58
        s_cmp_eq_u32 s24, 15
        s_cselect_b32 s38, 0, s38
        s_mov_b32 s39, 0x20000
        s_add_u32 s36, s10, s58
        s_addc_u32 s37, s11, 0""")
    items = []
    for c in range(8):
        slot = c % 4
        for j in range(7):
            l = []
            if j == 0:
                l += [f"s_add_u32 m0, s56, {slot*SLOT}", "s_lshl_b32 s63, s62, 7"]
            if j == 4:
                l += [f"s_add_u32 m0, s57, {slot*SLOT}", "s_mul_i32 s63, s62, 176128", "s_add_u32 s62, s62, 1", "s_and_b32 s62, s62, 7"]
            if j < 4: l.append(f"buffer_load_dwordx4 v{vOX+j}, s[32:35], s63 offen offset:{1024*j} lds")
            else: l.append(f"buffer_load_dwordx4 v{vOW+j-4}, s[36:39], s63 offen offset:{1024*(j-4)} lds")
            items.append((l, f"c{c}", c - 3))
    W2B = {0: -9, 1: -9, 2: -9, 3: 5, 4: 6, 5: 6, 6: 7, 7: 7}
    for pos in range(early):
        for j in range(4):
            items.append((("W2", pos, j), f"p{pos}", W2B[pos]))
    vmL = Cnt(); ptr = [0]
    def emit(n, bar):
        while ptr[0] < min(n, len(items)) and items[ptr[0]][2] <= bar:
            l, tag, _ = items[ptr[0]]
            if l[0] == "W2":
                _, pos, j = l
                if j == 0:
                    a(f"s_add_u32 m0, s26, {w2_lds(pos)}")
                    goff(pos, 15, "s66")
                a(f"buffer_load_dwordx4 v{vOW2+j}, s[48:51], s66 offen offset:{1024*j} lds")
            else:
                for x in l: a(x)
            vmL.issue(tag); ptr[0] += 1
    def dma2(pos):
        a(f"s_add_u32 m0, s26, {w2_lds(pos)}")
        goff(pos, 15, "s66")
        for j in range(4):
            a(f"buffer_load_dwordx4 v{vOW2+j}, s[48:51], s66 offen offset:{1024*j} lds")
    emit(4, -1)
    w1calc(); w1srd()
    emit(pre1, -1); xst(2)
    common_setup()
    common_srds()
    a(f"""v_lshrrev_b32 v{t0}, 3, v{vLane}
    v_bfe_u32 v{t1}, v{vLane}, 4, 2
    v_lshlrev_b32 v{t1}, 1, v{t1}
    v_and_b32 v{t2}, 7, v{vLane}
    v_xor_b32 v{t1}, v{t1}, v{t2}
    v_lshlrev_b32 v{t0}, 10, v{t0}
    v_lshl_add_u32 v{vOW2}, v{t1}, 4, v{t0}""")
    for j in range(1, 4):
        a(f"v_add_u32 v{vOW2+j}, {j*(8192-1024)}, v{vOW2}")
    a("""s_lshl_b32 s30, s4, 7
    s_add_u32 s48, s14, s30
    s_addc_u32 s49, s15, 0
    s_sub_u32 s50, 1409024, s30
    s_mov_b32 s51, 0x20000""")
    if lsp:
        a("""s_lshl_b32 s30, s2, 2
        s_add_u32 s30, s30, s28
        s_mul_i32 s30, s30, 1376
        s_and_b32 s30, s30, 0xffffffc0
        s_add_u32 s58, s14, s30
        s_addc_u32 s59, s15, 0
        s_lshr_b32 s30, s2, 3
        s_mul_i32 s30, s30, 43
        s_mul_i32 s31, s28, 11
        s_add_u32 s30, s30, s31
        s_min_u32 s30, s30, 1365
        s_lshl_b32 s30, s30, 10
        s_add_u32 s60, s14, s30
        s_addc_u32 s61, s15, 0""")
        lds_ = []
        for i in range(22):
            lds_.append(f"s_load_dword s31, s[60:61], {(i//2)*1024+384+(i&1)*64}")
            if lmall: lds_.append(f"s_load_dword s31, s[58:59], {min(i*64, 1372)}")
        per = (len(lds_) + len(lsp) - 1) // len(lsp)
    xst(3)
    for i in range(8):
        la = LA[i] if isinstance(LA, (list, tuple)) else LA
        emit(7 * (i + 1) + la, i - 1)
        fstamp(2*i)
        a(f"s_waitcnt vmcnt({vmL.need(f'c{i}')})")
        fstamp(2*i+1)
        if i == 0: xst(4)
        a("s_barrier")
        if i == 0: stamp(2)
        if i == 7: stamp(3)
        if lsp and i in lsp:
            for x in lds_[lsp.index(i)*per:(lsp.index(i)+1)*per]: a(x)
    emit(999, 7)
    b2_load()
    stamp(4)
    a("s_waitcnt lgkmcnt(0)")
    if npz:
        a(f"s_add_u32 s30, s27, {early}")
        a("s_lshl_b32 s30, s30, 5")
        a("s_lshr_b32 s31, s2, 3")
        a(f"s_mul_i32 s31, s31, {(npz+15)//16}")
        a("s_add_u32 s30, s30, s31")
        a("s_min_u32 s30, s30, 1368")
        a("s_lshl_b32 s30, s30, 10")
        a("s_add_u32 s64, s14, s30")
        a("s_addc_u32 s65, s15, 0")
    a(f"buffer_load_dword v{vN}, v{vNA}, s[44:47], 0 offen sc1")
    ph2_scalars()
    for i in range(npz): a(f"s_load_dword s59, s[64:65], {i*64}")
    acc2_zero()
    a("s_waitcnt vmcnt(0)")
    acc2_bias()
    stage0()
    stamp(5); xst(12)
    a("s_barrier")
    stamp(6)
    if ldel: a(f"s_sleep {ldel}")
    if trot:
        n = 10 - early
        a(f"s_mul_i32 s64, s5, {trot}")
        for k in range(n):
            a(f"s_cmp_ge_u32 s64, {n}")
            a(f"s_cselect_b32 s65, {n}, 0")
            a("s_sub_u32 s64, s64, s65")
            a("s_lshl_b32 s65, s64, 14")
            a("s_add_u32 s65, s65, s26")
            a(f"s_add_u32 m0, s65, {w2_lds(early)}")
            a("s_add_u32 s66, s64, s27")
            a(f"s_add_u32 s66, s66, {early}")
            a("s_lshl_b32 s66, s66, 15")
            for j in range(4):
                a(f"buffer_load_dwordx4 v{vOW2+j}, s[48:51], s66 offen offset:{1024*j} lds")
            a("s_add_u32 s64, s64, 1")
    else:
        for pos in range(early, 10):
            if tthr is not None and pos > early: a(f"s_waitcnt vmcnt({tthr})")
            dma2(pos)
    poll_issue(0)
    a("s_waitcnt lgkmcnt(0)" if mb == 6 else "s_waitcnt vmcnt(1) lgkmcnt(0)")
    a("s_barrier")
    dma2(10)
    poll_issue(1)
    a("s_waitcnt vmcnt(5)")
    a("s_branch L_PHASE2")

    a.label("L_NOFLAG")
    a("s_waitcnt vmcnt(0) lgkmcnt(0)")
    a("s_barrier")
    stage0()
    acc2_zero(); acc2_bias()
    a("s_branch L_C2")
    a.raw("STUBS_HERE")
    a.label("L_PAD")
    a.raw("PAD_HERE")
    a.label("L_C")
    xst(5)
    common_setup()
    bA = acc2; bB = acc2 + 4
    for i in range(24): a(f"v_mov_b32 v{bB+i}, 0")
    a(f"""v_and_b32 v{t0}, 15, v{vLane}
    v_lshrrev_b32 v{t2}, 4, v{vLane}
    v_lshrrev_b32 v{t1}, 1, v{t0}
    v_xor_b32 v{t1}, v{t1}, v{t2}
    v_lshlrev_b32 v{t1}, 4, v{t1}
    v_lshl_add_u32 v{t1}, v{t0}, 7, v{t1}
    v_lshl_add_u32 v{vAX}, v{vQ}, 12, v{t1}
    v_xor_b32 v{vAX+1}, 64, v{vAX}
    v_add_u32 v{vAX+2}, {2*SLOT}, v{vAX}
    v_add_u32 v{vAX+3}, {2*SLOT}, v{vAX+1}
    v_lshrrev_b32 v{t1}, 2, v{t0}
    v_lshl_add_u32 v{t1}, v{t2}, 3, v{t1}
    v_mul_u32_u24 v{t1}, 192, v{t1}
    v_and_b32 v{t0}, 3, v{vLane}
    v_lshl_add_u32 v{t1}, v{t0}, 3, v{t1}
    v_add_u32 v{t1}, 16384, v{t1}
    v_and_b32 v{t0}, 1, v{t2}
    v_lshlrev_b32 v{t0}, 5, v{t0}
    v_add_u32 v{vAW}, v{t1}, v{t0}
    v_sub_u32 v{vAW+1}, v{t1}, v{t0}
    v_add_u32 v{vAW+2}, {2*SLOT}, v{vAW}
    v_add_u32 v{vAW+3}, {2*SLOT}, v{vAW+1}
    v_mov_b32 v{bA+2}, 0
    v_mov_b32 v{bA+3}, 0
    v_mov_b32 v{t0}, 0x3f80""")
    for g in range(4):
        a(f"v_cmp_eq_u32 vcc, {g}, v{t2}")
        a("s_nop 1")
        a(f"v_cndmask_b32 v{bB+4*g}, 0, v{t0}, vcc")
    a(f"v_mov_b32 v{bB+17}, v{bB}")
    a(f"v_mov_b32 v{bB+21}, v{bB+4}")
    a(f"""s_nop 0
    v_mov_b32 v{vC0}, 0x{f32bits(C0):08x}
    v_mov_b32 v{vC0+1}, 0x{f32bits(C0):08x}
    s_mov_b32 s48, 0x{f32bits(C1):08x}
    s_mov_b32 s49, 0x{f32bits(C1):08x}
    v_bfe_u32 v{t0}, v{vLane}, 4, 1
    v_mul_u32_u24 v{t0}, {MBS}, v{t0}
    v_add_u32 v{t0}, v{t0}, v{vFA}
    v_lshlrev_b32 v{t2}, 1, v{vLane}
    v_lshlrev_b32 v{vFS}, 24, v{vLane}
    s_mul_i32 s58, s24, 192
    s_lshl_b32 s59, s6, 2
    s_add_u32 s59, s59, s7
    s_mul_i32 s62, s59, {MBS}
    s_mul_i32 s61, s24, 6144
    s_add_u32 s50, s62, s61
    s_add_u32 s51, s50, 4096
    s_lshl_b32 s63, s24, 2
    s_add_u32 s62, s62, s63
    s_add_u32 s66, s62, {MB_BYTES}
    s_mul_i32 s63, s25, {2*MBS}
    s_add_u32 s63, s63, {MB_BYTES}
    s_lshr_b32 s59, s59, 1
    s_waitcnt lgkmcnt(0)""")
    stamp(1); xst(6)
    a(f"""s_mov_b32 s32, s12
    s_mov_b32 s33, s13
    s_mov_b32 s34, 2752
    s_mov_b32 s35, 0x20000
    buffer_load_ushort v{bA}, v{t2}, s[32:35], s58 offen
    buffer_load_ushort v{bA+1}, v{t2}, s[32:35], s58 offen offset:128""")
    common_srds()
    a(f"""s_or_b32 s61, s4, s7
    s_cmp_lg_u32 s61, 0
    s_cbranch_scc1 L_NOLEAD
    buffer_load_dword v{vF}, v{t0}, s[40:43], s63 offen sc1
    v_bfe_u32 v{t1}, v{vLane}, 4, 1
    v_sub_u32 v{t1}, v{vLane}, v{t1}
    v_add_u32 v{t1}, 2, v{t1}
    s_nop 0""")
    a.label("L_NOLEAD")
    xst(7)
    def lead2():
        a(f"""s_or_b32 s61, s4, s7
        s_cmp_lg_u32 s61, 0
        s_cbranch_scc1 L_NOLEAD2
        v_bfe_u32 v{t1}, v{vLane}, 4, 1
        v_sub_u32 v{t1}, v{vLane}, v{t1}
        v_add_u32 v{t1}, 2, v{t1}
        v_lshrrev_b32 v{t1}, v{t1}, v{vF}
        v_and_b32 v{t1}, 1, v{t1}
        v_cmp_eq_u32 vcc, 0, v{t1}
        s_lshl_b32 s30, s25, 2
        s_nop 0
        s_and_b32 s31, vcc_lo, 0x7fff
        s_lshl_b32 s31, s31, 2
        s_and_b32 s61, vcc_lo, 0x7fff0000
        s_lshl_b32 s61, s61, 1
        s_or_b32 s31, s31, s61
        s_or_b32 s31, s31, 1
        v_mov_b32 v{t1}, s31
        buffer_store_dword v{t1}, v{vFS}, s[44:47], s30 offen sc1""")
        a.label("L_NOLEAD2")
    ph2_scalars()
    if rep:
        a("s_lshl_b32 s30, s6, 2\ns_add_u32 s30, s30, s7\ns_lshl_b32 s30, s30, 12\ns_lshl_b32 s31, s24, 2\ns_add_u32 s30, s30, s31")
        a(f"s_add_u32 s66, s30, {H_BYTES}")
        if rep == 1:
            tab = 0
            need = {0: range(0,4), 1: range(3,8), 2: range(7,11), 3: range(11,15)}
            for f in range(16):
                for k in range(4):
                    if f in need[k]: tab |= 1 << (4*f + k)
            a(f"s_mov_b32 s60, 0x{tab & 0xffffffff:08x}")
            a(f"s_mov_b32 s61, 0x{tab >> 32:08x}")
            a("s_lshr_b64 s[60:61], s[60:61], s31")
            a("s_and_b32 s60, s60, 15")
            a("s_mul_i32 s60, s60, 0x11111111")
        else:
            a("s_mov_b32 s60, 0x11111111")
        a("s_mov_b32 s61, 0")
        a(f"v_lshlrev_b32 v{t0}, 7, v{vLane}")
        a(f"v_mov_b32 v{t1}, 0x7f000000")
        a(f"v_cndmask_b32 v{vFR}, v{t1}, v{t0}, s[60:61]")
    a("s_mov_b32 s67, 0")
    AC = lambda P, mi: vr(acc + 16*(P>>1) + 8*mi + 4*(P&1), 4)
    def rd(u):
        c = u >> 2; t = (u >> 1) & 1; hf = u & 1
        slot = c % 4; hi = slot >> 1; off = (slot & 1) * SLOT
        W = [f"ds_read_b64_tr_b16 {vr(fw[u%3]+4*p+2*q,2)}, v{vAW+2*hi+((3*hf+p)&1)} offset:{off+t*6144+q*768+(3*hf+p)*32}" for p in range(3) for q in range(2)]
        if hf: return W
        X = [f"ds_read_b128 {vr(fx[t]+4*mi,4)}, v{vAX+2*hi+t} offset:{off+mi*2048}" for mi in range(2)]
        return [X[0]] + W[:2] + [X[1]] + W[2:]
    def mf(u, z=False):
        t = (u >> 1) & 1; hf = u & 1
        return [f"v_mfma_f32_16x16x32_bf16 {AC(3*hf+p,mi)}, {vr(fw[u%3]+4*p,4)}, {vr(fx[t]+4*mi,4)}, {'0' if z else AC(3*hf+p,mi)}" for p in range(3) for mi in range(2)]
    def inter(m, r):
        r = list(r)
        for i, x in enumerate(m):
            a(x)
            for _ in range(2 if (len(r) > len(m) - i - 1) else 1):
                if r: a(r.pop(0))
        assert not r
    vm = Cnt()
    def hstore(idx):
        so = "s50" if idx < 4 else "s51"
        if idx == 5: gst(8)
        if late_st:
            if idx < 5:
                gst(2 + idx); return
            for k in range(5):
                a(f"buffer_store_dwordx4 {vr(O[k],4)}, v{vOH}, s[40:43], {'s50' if k < 4 else 's51'} offen offset:{(k%4)*1024} sc1")
        a(f"buffer_store_dwordx4 {vr(O[idx],4)}, v{vOH}, s[40:43], {so} offen offset:{(idx%4)*1024} sc1")
        vm.issue(f"st{idx}")
        gst(2 + idx)
        if idx == 5: gst(10, True)
    def flag(lvl):
        a(f"buffer_store_dword v{vFV+lvl-1}, v{vFR if rep else vFS}, s[40:43], s66 offen sc1")
        vm.issue(f"f{lvl}")
    xst(8)
    for c in range(7):
        fstamp(2*c)
        a("s_barrier")
        fstamp(2*c+1)
        if c == 0: stamp(2)
        if c == 5:
            a(f"buffer_load_dword v{vN}, v{vNA}, s[44:47], 0 offen sc1")
            b2_load()
        u = 4 * c
        for x in rd(u): a(x)
        if c >= 1:
            inter(mf(u - 1), rd(u + 1))
        else:
            for x in rd(u + 1): a(x)
        a("s_waitcnt lgkmcnt(6)")
        inter(mf(u, c == 0), rd(u + 2))
        a("s_waitcnt lgkmcnt(8)")
        inter(mf(u + 1, c == 0), rd(u + 3))
        a("s_waitcnt lgkmcnt(6)")
        for x in mf(u + 2): a(x)
        if c == bat:
            a("s_waitcnt vmcnt(0)")
            for P in range(6):
                for mi in range(2):
                    a(f"v_mfma_f32_16x16x32_bf16 {AC(P,mi)}, {vr(bA,4)}, {vr(bB+4*P,4)}, {AC(P,mi)}")
            lead2()
        a("s_waitcnt lgkmcnt(0)")
        if c == 6:
            for x in mf(27): a(x)
    fstamp(14)
    a("s_barrier")
    fstamp(15); gst(12); gst(13, True)
    stamp(3)
    LX = lambda t, mi: lastbuf + 8*t + 4*mi
    LW = lambda P, t: lastbuf + 16 + 8*P + 4*t
    lg = Cnt()
    def R(x, tag): a(x); lg.issue(tag)
    def rx(t, mi): R(f"ds_read_b128 {vr(LX(t,mi),4)}, v{vAX+2+t} offset:{SLOT+mi*2048}", f"x{t}{mi}")
    def rw(P, t):
        for q in range(2): R(f"ds_read_b64_tr_b16 {vr(LW(P,t)+2*q,2)}, v{vAW+2+(P&1)} offset:{SLOT+t*6144+q*768+P*32}", f"w{P}{t}")
    def m(P, t, mi): return f"v_mfma_f32_16x16x32_bf16 {AC(P,mi)}, {vr(LW(P,t),4)}, {vr(LX(t,mi),4)}, {AC(P,mi)}"
    def W(tag): a(f"s_waitcnt lgkmcnt({lg.need(tag)})")
    rx(0,0); rw(0,0); rw(1,0); rx(1,0); rw(0,1); rw(1,1); rx(0,1); rx(1,1)
    W("w10"); a(m(0,0,0)); a(m(1,0,0)); rw(2,0); rw(3,0)
    W("w11"); a(m(0,1,0)); a(m(1,1,0)); rw(2,1); rw(3,1)
    W("x11"); a(m(0,0,1)); rw(4,0); a(m(1,0,1)); rw(5,0); a(m(0,1,1)); a(m(1,1,1))
    W("w30"); rw(4,1); rw(5,1)
    stamp(4); xst(9); gst(1); gst(9, True)
    a("s_cmp_eq_u32 s24, 15")
    a("s_cbranch_scc1 L_NOFLAG")
    rest = [m(P,0,mi) for mi in range(2) for P in (2,3)] + ["W0"] + [m(P,1,mi) for mi in range(2) for P in (2,3)] + [m(P,t,mi) for t in range(2) for mi in range(2) for P in (4,5)]
    if gmode == 0:
        cost = 0; nxt = gsp
        for ins in gelu8_sc(acc, T, O[0], 48, vC0):
            a(ins)
            cost += 8 if ("exp" in ins or "rcp" in ins) else 4
            if cost >= nxt and rest:
                x = rest.pop(0)
                if x == "W0":
                    a("s_waitcnt lgkmcnt(0)"); x = rest.pop(0)
                a(x); nxt = cost + gsp
        assert not rest
        hstore(0)
        for ins in gelu8_pk(acc + 8, T, O[1], 48, vC0): a(ins)
    else:
        for gi in range(2):
            k = 0
            for ins in gelu8_pk(acc + 8*gi, T, O[gi], 48, vC0):
                tr = "exp" in ins or "rcp" in ins
                if tr:
                    k += 1
                    if rest and (gmode == 1 or (k % 2 == 1) ) and (gmode == 1 or True):
                        x = rest.pop(0)
                        if x == "W0":
                            a("s_waitcnt lgkmcnt(0)"); x = rest.pop(0)
                        a(x)
                a(ins)
            if gi == 0: hstore(0)
        assert not rest
    hstore(1)
    a("s_waitcnt vmcnt(0)" if late_st else "s_waitcnt vmcnt(2)")
    a.label("L_PN")
    a(f"v_readlane_b32 s31, v{vN}, s59")
    a("s_add_u32 s67, s67, 1")
    a("s_nop 1")
    a("s_cmp_eq_u32 s31, 0")
    a("s_cbranch_scc1 L_PN_RETRY")
    a.label("L_PN_OK")
    stubs.label("L_PN_RETRY")
    stubs(f"s_cmp_gt_u32 s67, {LIM}")
    stubs("s_cbranch_scc1 L_PN_OK")
    stubs("s_sleep 16")
    stubs(f"buffer_load_dword v{vN}, v{vNA}, s[44:47], 0 offen sc1")
    stubs("s_waitcnt vmcnt(0)")
    stubs("s_branch L_PN")
    a(f"v_mov_b32 v{vFV}, s31")
    a(f"v_add_u32 v{vFV+2}, 2, v{vFV}")
    a("s_cmp_eq_u32 s24, 14")
    a("s_cbranch_scc1 L_ST14")
    stubs.label("L_ST14")
    if d14: stubs(f"s_sleep {d14}")
    stubs("s_barrier")
    stubs("s_branch L_LASTF")
    for idx in range(2, 6):
        for ins in gelu8_pk(acc + 8*idx, T, O[idx], 48, vC0): a(ins)
        hstore(idx)
        if idx == bs_at: a("s_barrier")
        if staged and idx == f1at:
            a(f"s_waitcnt vmcnt({vm.need('st1')})")
            flag(1)
    stamp(5); xst(10)
    if staged:
        a(f"s_waitcnt vmcnt({vm.need('st3')})")
        flag(2)
    a.label("L_LASTF")
    stage0()
    acc2_zero(); acc2_bias()
    a(f"s_waitcnt vmcnt(0)")
    stamp(6); xst(11); gst(11)
    flag(3)
    a.label("L_C2")
    poll_issue(1)
    a(f"v_mov_b32 v{vF}, 0")
    a("s_waitcnt lgkmcnt(0)")
    a("s_barrier")

    a.label("L_PHASE2")
    stamp(7)
    a("s_mov_b32 s67, 0")
    a.label("L_CN")
    a(f"v_readlane_b32 s62, v{vN}, s25")
    a("s_add_u32 s67, s67, 1")
    a("s_nop 1")
    a("s_cmp_eq_u32 s62, 0")
    a("s_cbranch_scc1 L_CN_RETRY")
    a.label("L_CN_OK")
    stubs.label("L_CN_RETRY")
    stubs(f"s_cmp_gt_u32 s67, {LIM}")
    stubs("s_cbranch_scc1 L_CN_OK")
    stubs("s_sleep 16")
    stubs(f"buffer_load_dword v{vN}, v{vNA}, s[44:47], 0 offen sc1")
    stubs("s_waitcnt vmcnt(0)")
    stubs("s_branch L_CN")
    a("s_sub_u32 s62, s62, 1")
    chk(0, 0)
    a("s_cbranch_scc1 L_GO")
    if npoll == 1:
        a.label("L_POLL")
        a(f"s_waitcnt vmcnt(0)")
        chk(1, 0)
        a("s_cbranch_scc1 L_GO")
        a("s_add_u32 s67, s67, 1")
        if psleep: a(f"s_sleep {psleep}")
        poll_issue(1)
        a(f"s_cmp_le_u32 s67, {LIM}")
        a("s_cbranch_scc1 L_POLL")
    else:
        order = list(range(1, npoll + 1))
        for k in order[1:]:
            poll_issue(k)
            if k != order[-1]: a(f"s_sleep {pgap}")
        a.label("L_POLL")
        for k in order:
            a(f"s_waitcnt vmcnt({npoll-1})")
            chk(k, 0)
            a("s_cbranch_scc1 L_GO")
            if psleep: a(f"s_sleep {psleep}")
            poll_issue(k)
        a("s_add_u32 s67, s67, 1")
        a(f"s_cmp_le_u32 s67, {LIM}")
        a("s_cbranch_scc1 L_POLL")
    a.label("L_GO")
    stamp(8)
    vm = Cnt(); lg = Cnt()
    order = list(range(16)) + [16, 18, 20, 17, 19, 21]
    def hload(s):
        if s < 16:
            if s % 2 == 0: goff(s >> 1, 11, "s66")
            so = "s66"; io = (s & 1) * 1024
        else:
            if s == 16:
                goff(8, 11, "s66"); a("s_add_u32 s64, s66, 4096")
            so = "s66" if s < 20 else "s64"; io = (s & 1) * 1024 + (2048 if s in (18, 19) else 0)
        a(f"buffer_load_dwordx4 {vr(fh[s],4)}, v{vOH2}, s[36:39], {so} offen offset:{io} sc1")
        vm.issue(f"h{s}")
    for k in range(PF): hload(order[k])
    for x in wrd(1): a(x)
    lg.issue("w1", 8)
    def M(pos, mi, o):
        ac = vr(acc2 + 8*o + 4*mi, 4)
        return f"v_mfma_f32_16x16x32_bf16 {ac}, {vr(WS(pos)+4*o,4)}, {vr(fh[2*pos+mi],4)}, {'0' if pos == 0 else ac}"
    def DW(o, mi):
        return f"ds_write_b128 v{vRW+(o&1)}, {vr(acc2+8*o+4*mi,4)} offset:{(o>>1)*128+mi*4096}"
    for k in range(19):
        s = order[k]; pos = s >> 1; mi = s & 1
        if s == mb:
            if mb <= 8: a("s_waitcnt lgkmcnt(0)")
            a("s_barrier")
        w = f"s_waitcnt vmcnt({vm.need(f'h{s}')})"
        if mi == 0 and pos >= 1: w += f" lgkmcnt({lg.need(f'w{pos}')})"
        a(w)
        if s == 0: stamp(9)
        r = wrd(pos + 2) if pos + 2 <= 10 else []
        if pos < 8: r = r[4*mi:4*mi+4]
        per_ = (len(r) + 3) // 4
        for o in range(4):
            a(M(pos, mi, o))
            for x in r[per_*o:per_*o+per_]:
                a(x); lg.issue(f"w{pos+2}")
        if k + PF < 22: hload(order[k + PF])
    a("s_waitcnt vmcnt(0)")
    stamp(10)
    seq = [M(8,1,0), M(9,1,0), M(10,1,0), M(8,1,1), DW(0,0), M(9,1,1), DW(1,0), M(10,1,1), DW(2,0), M(8,1,2), DW(3,0), M(9,1,2), DW(0,1),
           M(10,1,2), M(8,1,3), M(9,1,3), M(10,1,3), DW(1,1), "s_nop 3", DW(2,1), "s_nop 1", DW(3,1)]
    for x in seq: a(x)
    stamp(11)
    a("s_waitcnt lgkmcnt(0)")
    a("s_barrier")
    stamp(12)
    rdm = fh[0]
    for k in range(4):
        for e in range(2):
            a(f"ds_read_b128 {vr(rdm+8*k+4*e,4)}, v{vRR+e} offset:{k*8192}")
    for k in range(4):
        a(f"s_waitcnt lgkmcnt({6-2*k})")
        for i in range(0, 8, 2):
            a(f"v_pk_add_f32 {vr(vbf+i,2)}, {vr(vbf+i,2)}, {vr(rdm+8*k+i,2)}")
    od = fw2[0]
    for i in range(4):
        a(f"v_cvt_pk_bf16_f32 v{od+i}, v{vbf+2*i}, v{vbf+2*i+1}")
    a(f"buffer_store_dwordx4 {vr(od,4)}, v{vOO}, s[52:55], 0 offen {oaux}")
    if bf is not None:
        a("s_cmp_lg_u32 s29, 0")
        a("s_cbranch_scc1 L_NOBF2")
        a("s_barrier")
        a.label("L_NOBF2")
    if prof:
        stamp(13)
        a("s_waitcnt vmcnt(0)")
        stamp(14)
        a("s_waitcnt lgkmcnt(0)")
        if prof != 2:
            a(f"s_mov_b32 s{SB+30}, s67")
            a(f"s_mov_b32 s{SB+31}, 0")
        a(f"s_add_u32 s44, s22, {128<<20}")
        a(f"s_addc_u32 s45, s23, 0")
        a("s_mov_b32 s46, 0x1000000")
        a("s_mov_b32 s47, 0x20000")
        a("s_lshl_b32 s48, s2, 3")
        a("s_add_u32 s48, s48, s7")
        a(f"s_mul_i32 s48, s48, {NST*8}")
        a("v_mov_b32 v1, 0")
        for i in range(NST):
            a(f"v_mov_b32 v2, s{SB+2*i}")
            a(f"v_mov_b32 v3, s{SB+2*i+1}")
            a(f"buffer_store_dwordx2 v[2:3], v1, s[44:47], s48 offen offset:{8*i}")
            a("s_nop 1")
    a.label("L_END")
    a("s_endpgm")
    return a.text().replace('STUBS_HERE\n', stubs.text()), nv

DOC = """; ---------------------------------------------------------------------------------------------
;           gelu = x / (1 + exp2(x*(c0 + c1*x^2))) in fp32 and store bf16 h to d_ws in MFMA
; ---------------------------------------------------------------------------------------------
"""
def assemble_labels(text):
    import subprocess, re
    open("lay.s", "w").write(text)
    subprocess.run(["clang", "-x", "assembler", "-target", "amdgcn-amd-amdhsa", "-mcpu=gfx950", "-c", "lay.s", "-o", "lay.o"], check=True)
    o = subprocess.run(["llvm-objdump", "-t", "lay.o"], capture_output=True, text=True).stdout
    return {m.group(2): int(m.group(1), 16) for m in re.finditer(r"^([0-9a-f]{16}) .*\.text\s+[0-9a-f]+ (?:\.\w+ )?(\S+)$", o, re.M)}

def build(out, align=True, shift=0, **kw):
    k, nv = gen(**kw)
    def full(pad):
        s = HEADER + "; @launch grid=(256,1,1) block=(512,1,1) lds=163840\n" + DOC
        s += '.amdgcn_target "amdgcn-amd-amdhsa--gfx950"\n.text\n'
        if align: s += ".p2align 12\n"
        s += kernel_start(NAME) + k.replace("PAD_HERE\n", f"    ; unreachable gap (s_endpgm words): keeps 4 KiB code-page crossings off the critical path\n.fill {pad}, 4, 0xbf810000\n" if pad else "")
        s += '.section .rodata,"a"\n' + kernel_desc(NAME, nv, 102)
        return s
    pad = 0
    if align:
        L = assemble_labels(full(0))
        c2 = L["L_C2"] - L[NAME]
        pad = (((-c2) % 4096) + shift) // 4
        L = assemble_labels(full(pad))
        print({n: hex(L[n] - L[NAME]) for n in ("L_NOFLAG", "L_PAD", "L_C", "L_NOLEAD2", "L_PN", "L_C2", "L_GO", "L_END")})
    open(out, "w").write(full(pad))
    print(out, "vgprs", nv)

if __name__ == "__main__":
    build("v37x.s"); build("v37x_r2.s", rep=2); build("v37x_s0.s", psleep=0); build("v37xp.s", prof=1); build("v37p_r0.s", prof=1, rep=0)
```
